```python
import torch

def _softmax(x, axis=-1):
    return torch.softmax(x, dim=axis)
def _gelu(x):
    return torch.nn.functional.gelu(x, approximate="tanh")
def _silu(x):
    return torch.nn.functional.silu(x)
def _sigmoid(x):
    return torch.sigmoid(x)
def _layernorm(x, axis=-1, eps=1e-5):
    m = x.mean(dim=axis, keepdim=True)
    v = x.var(dim=axis, keepdim=True, unbiased=False)
    return (x - m) / torch.sqrt(v + eps)
def _scatter_add(tgt, idx, src, axis=0):
    return tgt.clone().index_add_(axis, idx, src)
def _segment_sum(src, seg, n):
    out = torch.zeros((n,) + src.shape[1:], dtype=src.dtype)
    return out.index_add_(0, seg, src)
def _pad(x, pw):
    flat = tuple(v for pair in reversed(pw) for v in pair)
    return torch.nn.functional.pad(x, flat)

kernel_name = 'recurrent_scan__spectral_fnet__moe_arch_mod__prompt'

def setup_inputs():

    _w = (lambda a: (lambda t: t.to(torch.bfloat16) if t.is_floating_point() else t)(torch.as_tensor(a)))
    def _A_setup():
        B, S, D = 1, 2048, 640
        ns = torch.arange(S)[:, None] * torch.arange(S)[None, :]
        nd = torch.arange(D)[:, None] * torch.arange(D)[None, :]
        Ws_re = torch.cos(-2.0 * torch.pi * ns / S).to(float)
        Ws_im = torch.sin(-2.0 * torch.pi * ns / S).to(float)
        Wd_re = torch.cos(-2.0 * torch.pi * nd / D).to(float)
        Wd_im = torch.sin(-2.0 * torch.pi * nd / D).to(float)
        return {
            "x": _w((lambda *s: torch.randn(*s, dtype=torch.bfloat16) * 0.1)(B, S, D)),
            "dft_seq_re": _w(Ws_re),
            "dft_seq_im": _w(Ws_im),
            "dft_hid_re": _w(Wd_re),
            "dft_hid_im": _w(Wd_im),
        }
    _A_in = _A_setup()

    def _B_setup():
        B, S, D, F, C = 1, 2048, 640, 1728, 2
        return {
            "x": _w((lambda *s: torch.randn(*s, dtype=torch.bfloat16) * 0.1)(B, S, D)),
            "w_r": _w((lambda *s: torch.randn(*s, dtype=torch.bfloat16) * 0.1)(D)),
            "w_gate": _w((lambda *s: torch.randn(*s, dtype=torch.bfloat16) * 0.1)(D, F)),
            "w_up": _w((lambda *s: torch.randn(*s, dtype=torch.bfloat16) * 0.1)(D, F)),
            "w_down": _w((lambda *s: torch.randn(*s, dtype=torch.bfloat16) * 0.1)(F, D)),
        }
    _B_in = _B_setup()

    return {
        "A_x": _A_in["x"],
        "A_dft_seq_re": _A_in["dft_seq_re"],
        "A_dft_seq_im": _A_in["dft_seq_im"],
        "A_dft_hid_re": _A_in["dft_hid_re"],
        "A_dft_hid_im": _A_in["dft_hid_im"],
        "B_x": _B_in["x"],
        "B_w_r": _B_in["w_r"],
        "B_w_gate": _B_in["w_gate"],
        "B_w_up": _B_in["w_up"],
        "B_w_down": _B_in["w_down"],
    }

def reference(A_x, A_dft_seq_re, A_dft_seq_im, A_dft_hid_re, A_dft_hid_im, B_x, B_w_r, B_w_gate, B_w_up, B_w_down):
    def _A_ref(x, dft_seq_re, dft_seq_im, dft_hid_re, dft_hid_im):
        a = torch.einsum("bsd,ed->bse", x, dft_hid_re)
        b = torch.einsum("bsd,ed->bse", x, dft_hid_im)
        y = torch.einsum("ts,bse->bte", dft_seq_re, a) - torch.einsum("ts,bse->bte", dft_seq_im, b)
        return y

    def _B_ref(x, w_r, w_gate, w_up, w_down):
        B, S, D = x.shape
        C = 2
        r = x @ w_r
        idx = torch.argsort(-r, axis=-1)[:, :C]
        idx_e = (lambda x, n, axis: torch.repeat_interleave(x, n, dim=axis))(idx.reshape(B, C, 1), D, axis=2)
        x_sel = (lambda x, i, axis: torch.take_along_dim(x, i, dim=axis))(x, idx_e, axis=1)
        g = _silu(x_sel @ w_gate)
        u = x_sel @ w_up
        y = (g * u) @ w_down
        r_sel = _sigmoid((lambda x, i, axis: torch.take_along_dim(x, i, dim=axis))(r, idx, axis=1))
        y = y * r_sel.reshape(B, C, 1)
        b_off = (torch.arange(B) * S).reshape(B, 1)
        flat_idx = (idx + b_off).reshape(B * C)
        zero = (x * 0.0).reshape(B * S, D)
        upd = _scatter_add(zero, flat_idx, y.reshape(B * C, D), axis=0)
        return x + upd.reshape(B, S, D)

    x = A_x
    xn = _layernorm(x, axis=-1)
    s = _A_ref(xn, A_dft_seq_re, A_dft_seq_im, A_dft_hid_re, A_dft_hid_im)
    g = _silu(_B_ref(xn, B_w_r, B_w_gate, B_w_up, B_w_down))
    return x + s * g
```

```python
import re

TRANS = ('v_exp_f32','v_log_f32','v_rcp_f32','v_rsq_f32','v_sqrt_f32','v_sin_f32','v_cos_f32',
         'v_exp_f16','v_log_f16','v_rcp_f16','v_rsq_f16','v_sqrt_f16','v_sin_f16','v_cos_f16','v_rcp_iflag_f32')

def regs_of(tok):
    tok = tok.strip()
    tok = re.sub(r'^-', '', tok)
    m = re.match(r'^abs\((.*)\)$', tok)
    if m: tok = m.group(1)
    m = re.match(r'^\|(.*)\|$', tok)
    if m: tok = m.group(1)
    m = re.match(r'^([vsa])(\d+)$', tok)
    if m: return {(m.group(1), int(m.group(2)))}
    m = re.match(r'^([vsa])\[(\d+):(\d+)\]$', tok)
    if m: return {(m.group(1), i) for i in range(int(m.group(2)), int(m.group(3))+1)}
    if tok in ('vcc','vcc_lo','vcc_hi'): return {('vcc',0)}
    if tok in ('exec','exec_lo','exec_hi'): return {('exec',0)}
    if tok == 'm0': return {('m0',0)}
    return set()

def split_ops(s):
    out=[]; depth=0; cur=''
    for ch in s:
        if ch in '[(': depth+=1
        if ch in '])': depth-=1
        if ch==',' and depth==0:
            out.append(cur.strip()); cur=''
        else: cur+=ch
    if cur.strip(): out.append(cur.strip())
    return out

class Ins:
    def __init__(self, text):
        self.text = text
        code = text.split(';')[0].strip()
        self.is_label = code.endswith(':')
        self.is_dir = code.startswith('.') and not self.is_label
        self.op = ''
        self.w=set(); self.r=set()
        self.kind='other'
        if self.is_label or self.is_dir or not code:
            self.kind='none'; return
        parts = code.split(None,1)
        op = parts[0]; self.op = op
        rest = parts[1] if len(parts)>1 else ''
        ops = split_ops(rest)
        toks=[]; self.mods=''
        for i,o in enumerate(ops):
            if i==len(ops)-1:
                p=o.split(None,1)
                toks.append(p[0]); self.mods = p[1] if len(p)>1 else ''
            else: toks.append(o)
        self.toks=toks
        base = re.sub(r'_(e32|e64|dpp|sdwa)$','',op)
        self.base=base
        R=[regs_of(t) for t in toks]
        self.dpp = op.endswith('_dpp') or 'row_' in self.mods or 'quad_perm' in self.mods
        self.srcC=set(); self.srcAB=set(); self.passes=0
        self.store_data=set()
        if op.startswith('v_mfma'):
            self.kind='mfma'
            self.w=R[0]; self.srcAB=R[1]|R[2]; self.srcC=R[3]; self.r=self.srcAB|self.srcC
            if '32x32x16' in op or '32x32x8' in op: self.passes=8
            elif '16x16x32' in op or '16x16x16' in op: self.passes=4
            elif '4x4x4' in op: self.passes=2
            else: raise Exception('mfma passes? '+op)
        elif op.startswith('v_'):
            self.kind='valu'
            if base.startswith('v_cmpx'):
                self.w=R[0]|{('exec',0)}; self.r=set().union(*R[1:])
            elif base.startswith('v_permlane') and 'swap' in base:
                self.w=R[0]|R[1]; self.r=R[0]|R[1]
            elif base in ('v_add_co_u32','v_sub_co_u32','v_subrev_co_u32','v_addc_co_u32','v_subb_co_u32','v_mad_u64_u32','v_div_scale_f32'):
                self.w=R[0]|R[1]; self.r=set().union(*R[2:])
            elif base=='v_nop':
                pass
            else:
                self.w=R[0]; self.r=set().union(*R[1:]) if len(R)>1 else set()
                if base in ('v_fmac_f32','v_dot2c_f32_bf16','v_dot2c_f32_f16','v_pk_fmac_f16','v_fmac_f16','v_writelane_b32') or self.dpp or 'UNUSED_PRESERVE' in self.mods:
                    self.r|=R[0]
            self.trans = base in TRANS
            self.dot = base.startswith('v_dot')
            self.sdwa_dst = ('dst_sel' in self.mods and 'dst_sel:DWORD' not in self.mods)
        elif op.startswith(('buffer_','global_','flat_')):
            self.kind='vmem'
            allr=set().union(*R) if R else set()
            if 'load' in op and ' lds' not in (' '+self.mods) and '_lds_' not in op:
                self.w=R[0]; self.r=set().union(*R[1:])
                if 'd16' in op: self.r|=R[0]
            elif 'atomic' in op and 'sc0' in self.mods:
                self.w=R[0]; self.r=allr
            else:
                self.r=allr
                if '_lds_' in op or ' lds' in (' '+self.mods): self.r|={('m0',0)}
                if 'store' in op and ('x3' in op or 'x4' in op):
                    self.store_data = R[0] if op.startswith('buffer_') else R[1]
        elif op.startswith('ds_'):
            self.kind='ds'
            if 'read' in op or 'bpermute' in op or 'permute' in op or 'swizzle' in op or 'rtn' in op:
                self.w=R[0]; self.r=set().union(*R[1:])
            else:
                self.r=set().union(*R)
        elif op.startswith('s_'):
            self.kind='salu'
            if op.startswith(('s_cmp','s_cbranch','s_branch','s_waitcnt','s_nop','s_barrier','s_endpgm','s_setprio','s_sleep','s_bitcmp')):
                self.r=set().union(*R) if R else set()
            else:
                self.w=R[0] if R else set(); self.r=set().union(*R[1:]) if len(R)>1 else set()
                if 'saveexec' in op: self.w|={('exec',0)}
            if op.startswith(('s_load','s_buffer_load','s_memtime','s_memrealtime','s_atomic')): self.kind='smem'
    def states(self):
        if self.kind=='none': return 0
        if self.op=='s_nop': return int(self.toks[0],0)+1
        return 1

def need(p, c):
    n=0
    V=lambda s:{x for x in s if x[0] in 'va'}
    S=lambda s:{x for x in s if x[0] in ('s','vcc')}
    if p.kind=='valu':
        sw=S(p.w); vw=V(p.w)
        if sw:
            if c.kind in('valu','mfma'):
                rd=set(c.r)
                if c.kind=='valu' and (c.base in('v_cndmask_b32','v_addc_co_u32','v_subb_co_u32','v_div_fmas_f32')) and len(c.toks)<4: rd|={('vcc',0)}
                if sw&rd:
                    n=max(n,2)
                    if c.base in('v_readlane_b32','v_writelane_b32','v_div_fmas_f32'): n=max(n,4)
            if c.kind=='vmem' and sw&c.r: n=max(n,5)
        if ('exec',0) in p.w:
            if c.kind=='valu' and c.dpp: n=max(n,5)
            if c.kind=='mfma': n=max(n,4)
            if c.kind=='valu' and (c.base.startswith('v_readlane') or c.base.startswith('v_readfirstlane') or c.base.startswith('v_writelane') or c.base.startswith('v_permlane')): n=max(n,4)
            if c.kind=='valu' and ('exec',0) in c.r: n=max(n,2)
        if vw:
            hit = vw & c.r
            if hit:
                if c.kind=='valu' and c.dpp: n=max(n,2)
                if c.kind=='valu' and c.base.startswith('v_permlane'): n=max(n,2)
                if c.kind=='valu' and c.base in('v_readlane_b32','v_readfirstlane_b32'): n=max(n,1)
                if c.kind=='mfma': n=max(n,2)
                if p.trans and c.kind in ('valu','vmem','ds'): n=max(n,1)
                if p.sdwa_dst and c.kind in('valu','vmem','ds'): n=max(n,1)
            if p.dot and c.kind in('valu','mfma','vmem','ds') and (vw&(c.r|c.w)):
                if c.kind=='valu' and c.base==p.base and len(c.toks)>=3:
                    ab = regs_of(c.toks[1])|regs_of(c.toks[2])
                    if vw&ab: n=max(n,3)
                else: n=max(n,3)
            if p.sdwa_dst and c.kind=='valu' and vw&c.w: n=max(n,1)
    if p.kind=='mfma':
        idx={2:0,4:1,8:2,16:3}[p.passes]
        if c.kind=='mfma':
            if p.w&c.srcAB: n=max(n,[5,8,12,20][idx])
            if p.w&c.srcC:
                if p.w==c.srcC and p.passes==c.passes: n=max(n,[2,0,0,0][idx])
                else: n=max(n,[4,6,10,18][idx])
            elif p.w&c.w: n=max(n,[4,6,10,18][idx])
        elif c.kind in('valu','vmem','ds'):
            if p.w&(c.r|c.w): n=max(n,[5,8,12,20][idx])
            if c.kind=='valu' and p.srcC&c.w: n=max(n,[1,3,7,15][idx])
    if p.kind=='vmem' and p.store_data and (p.store_data&c.w):
        n=max(n,2 if c.kind in('valu','mfma') else 1)
    if p.kind=='salu' and ('m0',0) in p.w and ('m0',0) in c.r and c.kind in('vmem','ds'): n=max(n,1)
    return n

class Prog:
    def __init__(self): self.lines=[]
    def __call__(self, text):
        for l in text.split('\n'):
            l=l.strip()
            if l: self.lines.append(l)
    def finish(self):
        ins=[Ins(l) for l in self.lines]
        out=[]
        labels={}
        pend={}
        hist=[]
        hist=[[]]
        for I in ins:
            if I.is_label:
                name=I.text.split(':')[0].strip()
                labels[name]=True
                if name in pend: hist=hist+pend.pop(name)
                out.append(I); continue
            if I.kind=='none':
                out.append(I); continue
            add=0
            for h in hist:
                d=0
                for P in reversed(h):
                    if d>=24: break
                    nd=need(P,I)
                    if nd-d>add: add=nd-d
                    d+=P.states()
            while add>0:
                k=min(add,16)
                N=Ins(f's_nop {k-1}')
                out.append(N)
                for h in hist: h.append(N)
                add-=k
            out.append(I)
            for h in hist:
                h.append(I)
                if len(h)>40: del h[0:len(h)-40]
            if len(hist)>1:
                uniq=[]
                for h in hist:
                    t=[]; d=0
                    for P in reversed(h):
                        t.append(id(P)); d+=P.states()
                        if d>=24: break
                    if t not in [u[0] for u in uniq]: uniq.append((t,h))
                hist=[u[1] for u in uniq]
            if I.op.startswith(('s_cbranch','s_branch')):
                tgt=I.toks[0]
                if tgt in labels:
                    if 'backok' not in I.text: raise Exception('backward branch: handle hazards manually: '+I.text)
                else:
                    pend.setdefault(tgt,[]).extend([list(h) for h in hist])
                if I.op=='s_branch': hist=[[]]
            if I.op=='s_endpgm': hist=[[]]
        return '\n'.join(('' if (i.is_label or i.is_dir) else '    ')+i.text for i in out)+'\n'

class Alloc:
    def __init__(self, kind, start=0): self.kind=kind; self.n=start; self.hi=start
    def __call__(self, cnt=1, align=1):
        self.n=(self.n+align-1)//align*align
        b=self.n; self.n+=cnt; self.hi=max(self.hi,self.n)
        return Reg(self.kind,b,cnt)

class Reg:
    def __init__(self,kind,base,cnt): self.kind=kind; self.base=base; self.cnt=cnt
    def __getitem__(self,i):
        if isinstance(i,slice):
            a=i.start or 0; b=i.stop if i.stop is not None else self.cnt
            assert 0<=a<b<=self.cnt
            return Reg(self.kind,self.base+a,b-a)
        assert 0<=i<self.cnt, (i,self.cnt)
        return Reg(self.kind,self.base+i,1)
    def __str__(self):
        return f'{self.kind}{self.base}' if self.cnt==1 else f'{self.kind}[{self.base}:{self.base+self.cnt-1}]'
    __repr__=__str__
    def __format__(self,spec): return str(self)
```

```python
import sys, struct, math
from asmlib import *

def f2u(x): return struct.unpack('<I', struct.pack('<f', x))[0]
def hx(x): return '0x%08x' % (x & 0xffffffff)
def fl(x): return hx(f2u(x))

PITCH = 1408
Z_OFF   = 0
W_OFF   = 0x300000
XG_OFF  = 0x600000
KEY_OFF = 0xB00000
ST_OFF  = 0xB02000
Y_OFF   = 0xB08000
SEL_OFF = 0xB0C000
XS_OFF  = 0xB0C100
WS_SIZE = 0xC00000
NFFN = 54
LOG2E = 1.4426950408889634

def srd(p, D, base, nbytes):
    p(f's_mov_b32 {D[0]}, {base[0]}')
    p(f's_mov_b32 {D[1]}, {base[1]}')
    p(f's_mov_b32 {D[2]}, {hx(nbytes)}')
    p(f's_mov_b32 {D[3]}, 0x00020000')

def wave_sum(p, t, sdst):
    for m in ('quad_perm:[1,0,3,2] row_mask:0xf','quad_perm:[2,3,0,1] row_mask:0xf','row_half_mirror row_mask:0xf',
              'row_mirror row_mask:0xf','row_bcast:15 row_mask:0xa','row_bcast:31 row_mask:0xc'):
        p(f'v_add_f32_dpp {t}, {t}, {t} {m} bank_mask:0xf')
    p(f'v_readlane_b32 {sdst}, {t}, 63')

def bf16r(p, d, s, smask):
    p(f'v_cvt_pk_bf16_f32 {d}, {s}, {s}')
    p(f'v_and_b32 {d}, {smask}, {d}')

def silu(p, d, z, t):
    p(f'v_mul_f32 {t}, {fl(-LOG2E)}, {z}')
    p(f'v_exp_f32 {t}, {t}')
    p(f'v_add_f32 {t}, 1.0, {t}')
    p(f'v_rcp_f32 {t}, {t}')
    p(f'v_mul_f32 {d}, {z}, {t}')

def desc(name, nv, ns):
    nv4 = (nv+3)//4*4
    return f""".p2align 6
.amdhsa_kernel {name}
  .amdhsa_next_free_vgpr {nv4}
  .amdhsa_next_free_sgpr {ns}
  .amdhsa_accum_offset {nv4}
  .amdhsa_group_segment_fixed_size 0
  .amdhsa_kernarg_size 104
  .amdhsa_user_sgpr_count 2
  .amdhsa_user_sgpr_kernarg_segment_ptr 1
  .amdhsa_system_sgpr_workgroup_id_x 1
  .amdhsa_float_denorm_mode_32 3
  .amdhsa_float_denorm_mode_16_64 3
.end_amdhsa_kernel
"""

def head(p, name):
    p(f'.globl {name}\n.p2align 8\n.type {name},@function\n{name}:')

def k1():
    p = Prog(); V = Alloc('v', 1); S = Alloc('s', 3)
    head(p, 'k1_kernel')
    pX = S(2,2); pWr = S(2,2); pWs = S(2,2)
    rX = S(4,4); rWr = S(4,4); rWs = S(4,4)
    sw = S(); ssig = S(); st0 = S(); srow = S(); sxo = S(); st = S(); smask = S(); ssgn = S(); ssum = S()
    sp0 = S(); sp1 = S(); szo = S()
    lane = V(); l32 = V(); h = V(); o8 = V(); o4 = V(); t = V(); t2 = V(); t3 = V()
    X = V(6,2); WR = V(6,2); F = V(10,2); Dd = V(10,2)
    BF = V(16,4)
    TC = V(12,2); TS = V(12,2); A2 = V(12,4)
    Aa = V(8,4); Ab = V(8,4)
    Tr = V(16,4); Ti = V(16,4); O = V(16,4); P = V(12,4)
    lw = V(); lr = V(); zoff = V(); mean = V(); mb = V(2,2); rden = mb[1]; mb0 = mb[0]
    XG = V(12,4)
    p('s_cmp_ge_u32 s2, 256')
    p('s_cbranch_scc1 k1_end')
    p(f's_load_dwordx2 {pX}, s[0:1], 0')
    p(f's_load_dwordx2 {pWr}, s[0:1], 48')
    p(f's_load_dwordx2 {pWs}, s[0:1], 96')
    p(f'v_lshrrev_b32 {t}, 6, v0')
    p(f'v_and_b32 {lane}, 63, v0')
    p(f'v_readfirstlane_b32 {sw}, {t}')
    p(f'v_lshlrev_b32 {o8}, 3, {lane}')
    p(f'v_lshlrev_b32 {o4}, 2, {lane}')
    p(f'v_and_b32 {l32}, 31, {lane}')
    p(f'v_lshrrev_b32 {h}, 5, {lane}')
    p(f's_lshr_b32 {ssig}, {sw}, 1')
    p(f's_lshl_b32 {st}, s2, 2')
    p(f's_add_u32 {ssig}, {ssig}, {st}')
    p(f's_and_b32 {st0}, {sw}, 1')
    p(f's_lshl_b32 {st}, {st0}, 10')
    p(f's_add_u32 {srow}, {ssig}, {st}')
    p(f's_mul_i32 {sxo}, {srow}, 1280')
    p(f's_mov_b32 {smask}, 0xffff0000')
    p('s_waitcnt lgkmcnt(0)')
    srd(p, rX, pX, 2048*1280); srd(p, rWr, pWr, 1280); srd(p, rWs, pWs, WS_SIZE)
    p(f'buffer_load_dwordx2 {X[0:2]}, {o8}, {rX}, {sxo} offen')
    p(f'buffer_load_dwordx2 {X[2:4]}, {o8}, {rX}, {sxo} offen offset:512')
    p(f'buffer_load_dword {X[4]}, {o4}, {rX}, {sxo} offen offset:1024')
    p(f'buffer_load_dwordx2 {WR[0:2]}, {o8}, {rWr}, 0 offen')
    p(f'buffer_load_dwordx2 {WR[2:4]}, {o8}, {rWr}, 0 offen offset:512')
    p(f'buffer_load_dword {WR[4]}, {o4}, {rWr}, 0 offen offset:1024')
    p('s_cmp_ge_u32 s2, 5')
    p('s_cbranch_scc1 k1_nozero')
    p(f's_lshl_b32 {st}, s2, 11')
    p(f's_add_u32 {st}, {st}, {hx(Y_OFF)}')
    p(f'v_lshlrev_b32 {t}, 2, v0')
    p(f'v_mov_b32 {t2}, 0')
    p(f'buffer_store_dword {t2}, {t}, {rWs}, {st} offen')
    p('k1_nozero:')
    e1f = O[0]; hf = O[1]; ang = O[2]; c0 = O[3]; c1 = O[4]; s0 = O[5]; s1 = O[6]; stp = O[7]; base = O[8]; sg = O[9]
    p(f'v_cvt_f32_u32 {e1f}, {l32}')
    p(f'v_cvt_f32_u32 {hf}, {h}')
    p(f'v_mul_f32 {stp}, {fl(1/32)}, {e1f}')
    p(f'v_mul_f32 {base}, {hf}, {stp}')
    p(f'v_mul_f32 {base}, {fl(8.0)}, {base}')
    p(f'v_and_b32 {sg}, 1, {l32}')
    p(f'v_mul_u32_u24 {sg}, 0x8000, {sg}')
    p(f'v_lshl_or_b32 {sg}, {sg}, 16, {sg}')
    for v in range(4):
        p(f'v_cos_f32 {c0}, {base}'); p(f'v_sin_f32 {s0}, {base}')
        p(f'v_add_f32 {base}, {base}, {stp}')
        p(f'v_cos_f32 {c1}, {base}'); p(f'v_sin_f32 {s1}, {base}')
        p(f'v_add_f32 {base}, {base}, {stp}')
        p(f'v_cvt_pk_f16_f32 {BF[v]}, {c0}, {c1}')
        p(f'v_cvt_pk_f16_f32 {BF[8+v]}, -{s0}, -{s1}')
        p(f'v_xor_b32 {BF[4+v]}, {sg}, {BF[v]}')
        p(f'v_xor_b32 {BF[12+v]}, {sg}, {BF[8+v]}')
    p(f'v_mul_f32 {stp}, {fl(1/640)}, {e1f}')
    p(f'v_mul_f32 {base}, 4.0, {hf}')
    for R in range(12):
        k = 8*(R//4)+R%4
        p(f'v_add_f32 {ang}, {fl(float(k))}, {base}')
        p(f'v_mul_f32 {ang}, {ang}, {stp}')
        p(f'v_cos_f32 {TC[R]}, {ang}'); p(f'v_sin_f32 {TS[R]}, {ang}')
    p(f'v_lshrrev_b32 {t}, 1, {l32}')
    p(f'v_cvt_f32_u32 {stp}, {t}')
    p(f'v_mul_f32 {stp}, {fl(1/20)}, {stp}')
    p(f'v_and_b32 {t}, 1, {l32}')
    p(f'v_cvt_f32_u32 {c1}, {t}')
    p(f'v_mul_f32 {c1}, {fl(0.25)}, {c1}')
    p(f'v_cmp_eq_u32 vcc, 0, {h}')
    for R in range(12):
        k = 8*(R//4)+R%4
        p(f'v_add_f32 {ang}, {fl(float(k))}, {base}')
        p(f'v_fma_f32 {ang}, {ang}, {stp}, {c1}')
        p(f'v_cos_f32 {c0}, {ang}'); p(f'v_sin_f32 {s0}, {ang}')
        p(f'v_cvt_pk_f16_f32 {A2[R]}, {c0}, {s0}')
        if R >= 8: p(f'v_cndmask_b32 {A2[R]}, 0, {A2[R]}, vcc')
    p(f's_mul_i32 {st}, {sw}, 1280')
    p(f'v_add_u32 {lw}, {st}, {o8}')
    p(f'v_bfe_u32 {t}, {lane}, 2, 2')
    p(f'v_lshl_add_u32 {t}, {h}, 3, {t}')
    p(f'v_mul_u32_u24 {t}, 40, {t}')
    p(f'v_and_b32 {t2}, 3, {lane}')
    p(f'v_lshlrev_b32 {t2}, 3, {t2}')
    p(f'v_and_b32 {t3}, 16, {lane}')
    p(f'v_cmp_eq_u32 vcc, 0, {t3}')
    p(f'v_cndmask_b32 {t2}, 32, {t2}, vcc')
    p(f's_and_b32 {st}, {sw}, 6')
    p(f's_mul_i32 {st}, {st}, 1280')
    p(f'v_add3_u32 {lr}, {t}, {t2}, {st}')
    p(f's_cmp_eq_u32 {st0}, 0')
    p(f's_cselect_b32 {ssgn}, 0x3c003c00, 0xbc00bc00') if False else None
    p(f's_mov_b32 {ssgn}, 0x3c003c00')
    p(f's_mov_b32 {st}, 0xbc00bc00')
    p(f's_cselect_b32 {ssgn}, {ssgn}, {st}')
    p(f'v_lshlrev_b32 {zoff}, 8, {h}')
    p(f'v_lshl_add_u32 {zoff}, {l32}, 2, {zoff}')
    p(f's_mul_i32 {szo}, {srow}, {PITCH}')
    p(f's_mov_b32 {sp0}, 0x05040100')
    p(f's_mov_b32 {sp1}, 0x07060302')
    p('s_waitcnt vmcnt(0)')
    for j in range(5):
        p(f'v_lshlrev_b32 {F[2*j]}, 16, {X[j]}')
        p(f'v_and_b32 {F[2*j+1]}, {smask}, {X[j]}')
    p(f'v_pk_add_f32 {Dd[0:2]}, {F[0:2]}, {F[2:4]}')
    p(f'v_pk_add_f32 {Dd[2:4]}, {F[4:6]}, {F[6:8]}')
    p(f'v_pk_add_f32 {Dd[0:2]}, {Dd[0:2]}, {F[8:10]}')
    p(f'v_pk_add_f32 {Dd[0:2]}, {Dd[0:2]}, {Dd[2:4]}')
    p(f'v_add_f32 {t}, {Dd[0]}, {Dd[1]}')
    wave_sum(p, t, ssum)
    p(f'v_mov_b32 {mean}, {ssum}')
    p(f'v_mul_f32 {mean}, {fl(1/640)}, {mean}')
    bf16r(p, mb0, mean, smask)
    for j in range(10): p(f'v_sub_f32 {Dd[j]}, {F[j]}, {mb0}')
    p(f'v_mul_f32 {t}, {Dd[0]}, {Dd[0]}')
    p(f'v_mul_f32 {t2}, {Dd[1]}, {Dd[1]}')
    for j in range(2,10,2):
        p(f'v_fmac_f32 {t}, {Dd[j]}, {Dd[j]}')
        p(f'v_fmac_f32 {t2}, {Dd[j+1]}, {Dd[j+1]}')
    p(f'v_add_f32 {t}, {t}, {t2}')
    wave_sum(p, t, ssum)
    p(f'v_sub_f32 {mean}, {mean}, {mb0}')
    p(f'v_mul_f32 {mean}, {mean}, {mean}')
    p(f'v_mov_b32 {t}, {ssum}')
    p(f'v_mul_f32 {t}, {fl(1/640)}, {t}')
    p(f'v_sub_f32 {t}, {t}, {mean}')
    p(f'v_max_f32 {t}, 0, {t}')
    bf16r(p, t, t, smask)
    p(f'v_add_f32 {t}, {fl(1e-5)}, {t}')
    bf16r(p, t, t, smask)
    p(f'v_sqrt_f32 {t}, {t}')
    bf16r(p, t, t, smask)
    p(f'v_rcp_f32 {rden}, {t}')
    XN = P
    for j in range(5):
        p(f'v_cvt_pk_bf16_f32 {XN[j]}, {Dd[2*j]}, {Dd[2*j+1]}')
    for j in range(5):
        p(f'v_lshlrev_b32 {Dd[2*j]}, 16, {XN[j]}')
        p(f'v_and_b32 {Dd[2*j+1]}, {smask}, {XN[j]}')
    for j in range(10): p(f'v_mul_f32 {Dd[j]}, {Dd[j]}, {rden}')
    for j in range(5):
        p(f'v_cvt_pk_bf16_f32 {XN[j]}, {Dd[2*j]}, {Dd[2*j+1]}')
    for j in range(5):
        p(f'v_lshlrev_b32 {F[2*j]}, 16, {XN[j]}')
        p(f'v_and_b32 {F[2*j+1]}, {smask}, {XN[j]}')
    H = P[6:12]
    for j in range(5):
        p(f'v_cvt_pk_f16_f32 {H[j]}, {F[2*j]}, {F[2*j+1]}')
    p(f'ds_write_b64 {lw}, {H[0:2]}')
    p(f'ds_write_b64 {lw}, {H[2:4]} offset:512')
    p(f'v_sub_u32 {t}, {lw}, {o4}')
    p(f'ds_write_b32 {t}, {H[4]} offset:1024')
    for j in range(5):
        p(f'v_lshlrev_b32 {Dd[2*j]}, 16, {WR[j]}')
        p(f'v_and_b32 {Dd[2*j+1]}, {smask}, {WR[j]}')
    p(f'v_mul_f32 {t}, {Dd[0]}, {F[0]}')
    p(f'v_mul_f32 {t2}, {Dd[1]}, {F[1]}')
    for j in range(2,10,2):
        p(f'v_fmac_f32 {t}, {Dd[j]}, {F[j]}')
        p(f'v_fmac_f32 {t2}, {Dd[j+1]}, {F[j+1]}')
    p(f'v_add_f32 {t}, {t}, {t2}')
    p('s_waitcnt lgkmcnt(0)')
    p('s_barrier')
    for kk in range(2):
        for u in range(2):
            p(f'ds_read_b64_tr_b16 {Aa[4*kk+2*u:4*kk+2*u+2]}, {lr} offset:{640*kk+160*u}')
            p(f'ds_read_b64_tr_b16 {Ab[4*kk+2*u:4*kk+2*u+2]}, {lr} offset:{1280+640*kk+160*u}')
    wave_sum(p, t, ssum)
    p(f'v_mov_b32 {t}, {ssum}')
    bf16r(p, t, t, smask)
    p(f'v_ashrrev_i32 {t2}, 31, {t}')
    p(f'v_or_b32 {t2}, 0x80000000, {t2}')
    p(f'v_xor_b32 {t}, {t}, {t2}')
    p(f'v_and_b32 {t}, {smask}, {t}')
    p(f'v_or_b32 {t}, {srow}, {t}')
    p(f'v_mov_b32 {t2}, 0')
    p(f's_lshl_b32 {st}, {srow}, 2')
    p(f's_add_u32 {st}, {st}, {hx(KEY_OFF)}')
    p(f's_lshl_b32 {ssum}, {srow}, 3')
    p(f's_add_u32 {ssum}, {ssum}, {hx(ST_OFF)}')
    p('s_mov_b64 exec, 1')
    p(f'buffer_store_dword {t}, {t2}, {rWs}, {st} offen')
    p(f'buffer_store_dwordx2 {mb}, {t2}, {rWs}, {ssum} offen')
    p('s_mov_b64 exec, -1')
    p('s_waitcnt lgkmcnt(0)')
    for j in range(8):
        p(f'v_pk_fma_f16 {Aa[j]}, {Ab[j]}, {ssgn}, {Aa[j]}')
    p(f'v_mfma_f32_32x32x16_f16 {Tr}, {Aa[0:4]}, {BF[0:4]}, 0')
    p(f'v_mfma_f32_32x32x16_f16 {Ti}, {Aa[0:4]}, {BF[8:12]}, 0')
    p(f'v_mfma_f32_32x32x16_f16 {Tr}, {Aa[4:8]}, {BF[4:8]}, {Tr}')
    p(f'v_mfma_f32_32x32x16_f16 {Ti}, {Aa[4:8]}, {BF[12:16]}, {Ti}')
    for j in range(10): p(f'v_mul_f32 {Dd[j]}, {fl(-LOG2E)}, {F[j]}')
    for j in range(10): p(f'v_exp_f32 {Dd[j]}, {Dd[j]}')
    for j in range(10): p(f'v_add_f32 {Dd[j]}, 1.0, {Dd[j]}')
    for j in range(10): p(f'v_rcp_f32 {Dd[j]}, {Dd[j]}')
    for j in range(10): p(f'v_mul_f32 {Dd[j]}, {F[j]}, {Dd[j]}')
    for j in range(5):
        p(f'v_cvt_pk_bf16_f32 {WR[j]}, {Dd[2*j]}, {Dd[2*j+1]}')
    for j in range(5):
        p(f'v_perm_b32 {XG[2*j]}, {X[j]}, {WR[j]}, {sp0}')
        p(f'v_perm_b32 {XG[2*j+1]}, {X[j]}, {WR[j]}, {sp1}')
    p(f's_lshl_b32 {st}, {sxo}, 1')
    p(f's_add_u32 {st}, {st}, {hx(XG_OFF)}')
    p(f'v_lshlrev_b32 {t}, 4, {lane}')
    p(f'buffer_store_dwordx4 {XG[0:4]}, {t}, {rWs}, {st} offen')
    p(f'buffer_store_dwordx4 {XG[4:8]}, {t}, {rWs}, {st} offen offset:1024')
    p(f'buffer_store_dwordx2 {XG[8:10]}, {o8}, {rWs}, {st} offen offset:2048')
    for R in range(0,12,2):
        a=O[R:R+2];
        p(f'v_pk_mul_f32 {O[0:2]}, {Tr[R:R+2]}, {TC[R:R+2]}')
        p(f'v_pk_mul_f32 {O[2:4]}, {Ti[R:R+2]}, {TC[R:R+2]}')
        p(f'v_pk_fma_f32 {O[0:2]}, {Ti[R:R+2]}, {TS[R:R+2]}, {O[0:2]}')
        p(f'v_pk_fma_f32 {O[2:4]}, {Tr[R:R+2]}, {TS[R:R+2]}, {O[2:4]} neg_lo:[1,0,0] neg_hi:[1,0,0]')
        p(f'v_cvt_pk_f16_f32 {P[R]}, {O[0]}, {O[2]}')
        p(f'v_cvt_pk_f16_f32 {P[R+1]}, {O[1]}, {O[3]}')
    p(f'v_mfma_f32_32x32x16_f16 {O}, {A2[0:4]}, {P[0:4]}, 0')
    p(f'v_mfma_f32_32x32x16_f16 {O}, {A2[4:8]}, {P[4:8]}, {O}')
    p(f'v_mfma_f32_32x32x16_f16 {O}, {A2[8:12]}, {P[8:12]}, {O}')
    for m in range(6):
        p(f'v_cvt_pk_f16_f32 {Tr[m]}, {O[2*m]}, {O[2*m+1]}')
    for m in range(6):
        if m == 5: p('s_mov_b32 exec_hi, 0')
        p(f'buffer_store_dword {Tr[m]}, {zoff}, {rWs}, {szo} offen offset:{512*(m//2)+128*(m%2)}')
    p('k1_end:')
    p('s_endpgm')
    return p.finish(), desc('k1_kernel', V.hi, S.hi)

def gen_A(p, A, stp, base, ph, hf, tmp):
    ang, c0, s0 = tmp
    for R in range(16):
        k = 8*(R//4)+R%4
        p(f'v_add_f32 {ang}, {fl(float(k))}, {hf}')
        if ph is None: p(f'v_mul_f32 {ang}, {ang}, {stp}')
        else: p(f'v_fma_f32 {ang}, {ang}, {stp}, {ph}')
        p(f'v_cos_f32 {c0}, {ang}'); p(f'v_sin_f32 {s0}, {ang}')
        p(f'v_cvt_pk_f16_f32 {A[R]}, {c0}, {s0}')

def top2_merge_dpp(p, m1, m2, a, b, mod):
    p(f'v_mov_b32_dpp {a}, {m1} {mod}')
    p(f'v_mov_b32_dpp {b}, {m2} {mod}')
    p(f'v_max_u32 {m2}, {m2}, {b}')
    p(f'v_med3_u32 {m2}, {m1}, {a}, {m2}')
    p(f'v_max_u32 {m1}, {m1}, {a}')

def k2():
    p = Prog(); S = Alloc('s', 3)
    head(p, 'k2_kernel')
    NWG = NFFN + 128 + 1
    pWs = S(2,2); pX = S(2,2); pG = S(2,2); pU = S(2,2); pD = S(2,2)
    rWs = S(4,4); rX = S(4,4); rW = S(4,4); rD = S(4,4)
    sw = S(); st = S(); st2 = S(); sj = S(); st0 = S(); ss2 = S(); sct = S(); sth = S(); smask = S()
    SO = S(16)
    sp0 = S(); sp1 = S(); sk1 = S(); sk2 = S()
    p(f's_cmp_ge_u32 s2, {NWG}')
    p('s_cbranch_scc1 k2_end')
    p(f's_load_dwordx2 {pWs}, s[0:1], 96')
    p(f's_load_dwordx2 {pX}, s[0:1], 0')
    p(f's_load_dwordx2 {pG}, s[0:1], 56')
    p(f's_load_dwordx2 {pU}, s[0:1], 64')
    p(f's_load_dwordx2 {pD}, s[0:1], 72')
    p(f'v_lshrrev_b32 v1, 6, v0')
    p(f'v_and_b32 v0, 63, v0')
    p(f'v_readfirstlane_b32 {sw}, v1')
    p(f's_cmp_lt_u32 s2, {NFFN}')
    p('s_cbranch_scc1 k2_ffn')
    V = Alloc('v', 1); lane = Reg('v',0,1)
    n = V(); h = V(); lo = V(); so = V(); t = V(); t2 = V(); stp = V(); ph = V(); hf = V(); tmp = [V(),V(),V()]
    B = V(16,4); A = V(16,4); Dacc = V(16,4); Pk = V(8)
    p(f'v_and_b32 {n}, 31, {lane}')
    p(f'v_lshrrev_b32 {h}, 5, {lane}')
    p(f's_sub_u32 {sj}, s2, {NFFN}')
    p(f's_and_b32 {sth}, {sw}, 1')
    for i in range(16):
        p(f's_mov_b32 {SO[i]}, {hx((8*(i//4)+i%4)*32*PITCH)}')
    p(f's_cmp_eq_u32 {sj}, 128')
    p('s_cbranch_scc1 k2_special')
    p(f's_bfe_u32 {st0}, {sj}, 0x10001')
    p(f's_lshr_b32 {ss2}, {sj}, 2')
    p(f's_and_b32 {st}, {sj}, 1')
    p(f's_mul_i32 {st}, {st}, 5')
    p(f's_lshr_b32 {sct}, {sw}, 1')
    p(f's_add_u32 {sct}, {sct}, {st}')
    p(f's_mul_i32 {st}, {ss2}, {PITCH}')
    p(f's_lshl_b32 {st2}, {sct}, 7')
    p(f's_add_u32 {st}, {st}, {st2}')
    p(f'v_lshl_add_u32 {t}, {n}, 2, {st}')
    p('s_branch k2_common')
    p('k2_special:')
    p(f's_cmp_ge_u32 {sw}, 4')
    p('s_cbranch_scc1 k2_end')
    p(f's_lshr_b32 {st0}, {sw}, 1')
    p(f'v_mul_u32_u24 {t}, {PITCH}, {n}')
    p(f'v_add_u32 {t}, 1280, {t}')
    p('k2_common:')
    p(f'v_mul_u32_u24 {t2}, {4*32*PITCH}, {h}')
    p(f'v_add_u32 {t}, {t}, {t2}')
    p(f's_mul_i32 {st}, {st0}, {1024*PITCH}')
    p(f'v_add_u32 {lo}, {st}, {t}')
    p(f's_lshl_b32 {st}, {sth}, 5')
    p(f's_add_u32 {st}, {st}, {st0}')
    p(f's_mul_i32 {st}, {st}, {32*PITCH}')
    p(f's_add_u32 {st}, {st}, {hx(W_OFF)}')
    p(f'v_add_u32 {so}, {st}, {t}')
    p('s_waitcnt lgkmcnt(0)')
    srd(p, rWs, pWs, WS_SIZE)
    for i in range(16):
        p(f'buffer_load_dword {B[i]}, {lo}, {rWs}, {SO[i]} offen')
    p(f's_lshl_b32 {st}, {sth}, 5')
    p(f's_add_u32 {st}, {st}, {st0}')
    p(f'v_and_b32 {t}, 30, {n}')
    p(f'v_add_u32 {t}, {st}, {t}')
    p(f'v_cvt_f32_u32 {stp}, {t}')
    p(f'v_mul_f32 {stp}, {fl(1/64)}, {stp}')
    p(f'v_and_b32 {t}, 1, {n}')
    p(f'v_cvt_f32_u32 {ph}, {t}')
    p(f'v_mul_f32 {ph}, {fl(0.25)}, {ph}')
    p(f'v_cvt_f32_u32 {hf}, {h}')
    p(f'v_mul_f32 {hf}, 4.0, {hf}')
    gen_A(p, A, stp, None, ph, hf, tmp)
    for kk in range(4):
        p(f's_waitcnt vmcnt({12-4*kk})')
        p(f'v_mfma_f32_32x32x16_f16 {Dacc}, {A[4*kk:4*kk+4]}, {B[4*kk:4*kk+4]}, {"0" if kk==0 else Dacc}')
    for m in range(8):
        p(f'v_cvt_pk_f16_f32 {Pk[m]}, {Dacc[2*m]}, {Dacc[2*m+1]}')
    for m in range(8):
        p(f'buffer_store_dword {Pk[m]}, {so}, {rWs}, {SO[4*(m//2)+2*(m%2)]} offen')
    p('s_endpgm')
    hi1 = V.hi
    V = Alloc('v', 1)
    n = V(); g = V(); t = V(); t2 = V(); t3 = V(); m1 = V(); m2 = V(); ko = V(); wo = V(); do = V(); xo = V(); lwa = V(); lra = V(); yo = V()
    msk = V(4,4)
    KY = V(32,4); L = V(32,4); LD = V(16,4); FR = KY; FD = V(16,4)
    XR = V(4,4); STt = V(2,2); XF = V(8,2); XA = V(4,4)
    ACC = L
    Ta = V(); Tb = V(); Tc = V(); RD = V(12,4); HF = V(4,4)
    p('k2_ffn:')
    p(f'v_and_b32 {n}, 15, {lane}')
    p(f'v_lshrrev_b32 {g}, 4, {lane}')
    p(f'v_lshlrev_b32 {ko}, 4, {lane}')
    sw5 = sj; smat = st0
    p(f's_cmp_ge_u32 {sw}, 5')
    p(f's_cselect_b32 {smat}, 1, 0')
    p(f's_mul_i32 {st}, {smat}, 5')
    p(f's_sub_u32 {sw5}, {sw}, {st}')
    p(f'v_lshrrev_b32 {t}, 2, {n}')
    p(f'v_lshlrev_b32 {t}, 5, {t}')
    p(f'v_lshl_add_u32 {t}, {g}, 3, {t}')
    p(f's_lshl_b32 {st}, {sw5}, 7')
    p(f'v_add_u32 {t}, {st}, {t}')
    p(f'v_mul_u32_u24 {wo}, 3456, {t}')
    p(f'v_and_b32 {t}, 3, {n}')
    p(f's_lshl_b32 {st}, s2, 6')
    p(f'v_lshl_add_u32 {t}, {t}, 4, {st}')
    p(f'v_add_u32 {wo}, {wo}, {t}')
    p(f'v_mul_u32_u24 {do}, {8*1280}, {g}')
    p(f's_mul_i32 {st}, s2, {32*1280}')
    p(f's_lshl_b32 {st2}, {sw}, 7')
    p(f's_add_u32 {st}, {st}, {st2}')
    p(f'v_lshl_add_u32 {t}, {n}, 3, {st}')
    p(f'v_add_u32 {do}, {do}, {t}')
    for j in range(4): p(f's_mov_b32 {SO[j]}, {2*j*3456}')
    p(f's_mov_b32 {SO[4]}, {hx(KEY_OFF)}')
    p(f's_mov_b32 {SO[5]}, {hx(KEY_OFF+4096)}')
    p(f's_mov_b32 {SO[6]}, 5120')
    p(f's_mov_b32 {smask}, 0xffff0000')
    p(f's_mov_b32 {sp0}, 0x05040100')
    p(f's_mov_b32 {sp1}, 0x07060302')
    p('s_waitcnt lgkmcnt(0)')
    srd(p, rWs, pWs, WS_SIZE)
    for j in range(8):
        p(f'buffer_load_dwordx4 {KY[4*j:4*j+4]}, {ko}, {rWs}, {SO[4+j//4]} offen offset:{1024*(j%4)}')
    p(f's_cmp_eq_u32 {smat}, 0')
    p(f's_cselect_b32 {rW[0]}, {pG[0]}, {pU[0]}')
    p(f's_cselect_b32 {rW[1]}, {pG[1]}, {pU[1]}')
    p(f's_mov_b32 {rW[2]}, {640*3456}')
    p(f's_mov_b32 {rW[3]}, 0x00020000')
    srd(p, rD, pD, 1728*1280); srd(p, rX, pX, 2048*1280)
    for j in range(8):
        p(f'buffer_load_dwordx4 {L[4*j:4*j+4]}, {wo}, {rW}, {SO[j//2]} offen offset:{3456*(j%2)}')
    for j in range(8):
        p(f'buffer_load_dwordx2 {LD[2*j:2*j+2]}, {do}, {rD}, {SO[6] if j>=4 else 0} offen offset:{1280*(j%4)}')
    p(f'v_and_b32 {t}, 3, {n}')
    p(f'v_lshlrev_b32 {t}, 6, {t}')
    p(f'v_lshl_add_u32 {t}, {g}, 4, {t}')
    p(f's_lshl_b32 {st}, {sw5}, 8')
    p(f'v_add_u32 {xo}, {st}, {t}')
    p(f'v_mul_u32_u24 {lwa}, 48, {lane}')
    p(f's_lshl_b32 {st}, {sw}, 2')
    p(f'v_add_u32 {lwa}, {st}, {lwa}')
    p(f'v_lshrrev_b32 {t}, 3, {n}')
    p(f'v_bfe_u32 {t2}, {n}, 2, 1')
    p(f'v_lshl_add_u32 {t}, {t2}, 1, {t}')
    p(f'v_lshlrev_b32 {t}, 4, {t}')
    p(f'v_and_b32 {t2}, 3, {n}')
    p(f'v_lshl_add_u32 {t}, {t2}, 2, {t}')
    p(f'v_add_u32 {t}, {t}, {g}')
    p(f'v_mul_u32_u24 {lra}, 48, {t}')
    p(f'v_and_b32 {t}, 1, {n}')
    p(f'v_cmp_eq_u32 vcc, 0, {t}')
    p(f'v_mov_b32 {t2}, 0xffff')
    p(f'v_mov_b32 {t3}, {smask}')
    p(f'v_cndmask_b32 {t2}, {t3}, {t2}, vcc')
    p(f'v_bfe_u32 {t}, {n}, 1, 2')
    for v in range(4):
        p(f'v_cmp_eq_u32 vcc, {v}, {t}')
        p(f'v_cndmask_b32 {msk[v]}, 0, {t2}, vcc')
    p(f'v_lshrrev_b32 {t}, 1, {g}')
    p(f'v_mul_u32_u24 {yo}, 2560, {t}')
    p(f'v_and_b32 {t}, 1, {g}')
    p(f'v_lshl_add_u32 {t}, {n}, 2, {t}')
    p(f'v_lshl_add_u32 {yo}, {t}, 2, {yo}')
    p(f's_and_b32 {st}, s2, 1')
    p(f's_mul_i32 {st}, {st}, 5120')
    p(f's_lshl_b32 {st2}, {sw}, 8')
    p(f's_add_u32 {SO[7]}, {st}, {st2}')
    p(f's_add_u32 {SO[7]}, {SO[7]}, {hx(Y_OFF)}')
    p('s_waitcnt vmcnt(16)')
    p(f'v_max_u32 {m1}, {KY[0]}, {KY[1]}')
    p(f'v_min_u32 {m2}, {KY[0]}, {KY[1]}')
    for j in range(2,32):
        p(f'v_med3_u32 {m2}, {m1}, {m2}, {KY[j]}')
        p(f'v_max_u32 {m1}, {m1}, {KY[j]}')
    for mod in ('quad_perm:[1,0,3,2]','quad_perm:[2,3,0,1]','row_half_mirror','row_mirror'):
        top2_merge_dpp(p, m1, m2, t, t2, mod+' row_mask:0xf bank_mask:0xf')
    a1=SO[8]; a2=SO[9]; b1=SO[10]; b2=SO[11]
    p(f'v_readlane_b32 {sk1}, {m1}, 0')
    p(f'v_readlane_b32 {sk2}, {m2}, 0')
    for ln in (16,32,48):
        p(f'v_readlane_b32 {b1}, {m1}, {ln}')
        p(f'v_readlane_b32 {b2}, {m2}, {ln}')
        p(f's_max_u32 {sk2}, {sk2}, {b2}')
        p(f's_min_u32 {a1}, {sk1}, {b1}')
        p(f's_max_u32 {sk2}, {sk2}, {a1}')
        p(f's_max_u32 {sk1}, {sk1}, {b1}')
    p(f's_and_b32 {a1}, {sk1}, 2047')
    p(f's_and_b32 {a2}, {sk2}, 2047')
    p(f'v_and_b32 {t}, 4, {n}')
    p(f'v_cmp_eq_u32 vcc, 0, {t}')
    p(f'v_mov_b32 {t}, {a1}')
    p(f'v_mov_b32 {t2}, {a2}')
    p(f'v_cndmask_b32 {t}, {t2}, {t}, vcc')
    p(f'v_mul_u32_u24 {t2}, 1280, {t}')
    p(f'v_add_u32 {t2}, {t2}, {xo}')
    p(f'v_lshlrev_b32 {t}, 3, {t}')
    p(f's_mov_b32 {b1}, {hx(ST_OFF)}')
    p(f'buffer_load_dwordx4 {XR}, {t2}, {rX}, 0 offen')
    p(f'buffer_load_dwordx2 {STt}, {t}, {rWs}, {b1} offen')
    p('s_waitcnt vmcnt(10)')
    for pp in range(4):
        for e in range(2):
            c = 2*pp+e
            for v in range(4):
                p(f'v_perm_b32 {FR[4*c+v]}, {L[4*(2*v+1)+pp]}, {L[4*(2*v)+pp]}, {sp1 if e else sp0}')
    p('s_waitcnt vmcnt(2)')
    for pp in range(2):
        for e in range(2):
            c = 2*pp+e
            for v in range(4):
                p(f'v_perm_b32 {FD[4*c+v]}, {LD[2*(2*v+1)+pp]}, {LD[2*(2*v)+pp]}, {sp1 if e else sp0}')
    p('s_waitcnt vmcnt(0)')
    for j in range(4):
        p(f'v_lshlrev_b32 {XF[2*j]}, 16, {XR[j]}')
        p(f'v_and_b32 {XF[2*j+1]}, {smask}, {XR[j]}')
    for j in range(8): p(f'v_sub_f32 {XF[j]}, {XF[j]}, {STt[0]}')
    for j in range(4): p(f'v_cvt_pk_bf16_f32 {XA[j]}, {XF[2*j]}, {XF[2*j+1]}')
    for j in range(4):
        p(f'v_lshlrev_b32 {XF[2*j]}, 16, {XA[j]}')
        p(f'v_and_b32 {XF[2*j+1]}, {smask}, {XA[j]}')
    for j in range(8): p(f'v_mul_f32 {XF[j]}, {XF[j]}, {STt[1]}')
    for j in range(4): p(f'v_cvt_pk_bf16_f32 {XA[j]}, {XF[2*j]}, {XF[2*j+1]}')
    for c in range(8):
        p(f'v_mfma_f32_16x16x32_bf16 {ACC[4*c:4*c+4]}, {XA}, {FR[4*c:4*c+4]}, 0')
    p('s_cmp_lg_u32 s2, 0')
    p('s_cbranch_scc1 k2_nopub')
    p(f'v_and_b32 {t}, 4, {n}')
    p(f'v_mul_u32_u24 {t}, 320, {t}')
    p(f'v_add_u32 {t}, {t}, {xo}')
    p(f's_mov_b32 {b1}, {hx(XS_OFF)}')
    p(f'buffer_store_dwordx4 {XA}, {t}, {rWs}, {b1} offen')
    p(f'v_mov_b32 {XF[0]}, {sk1}')
    p(f'v_mov_b32 {XF[1]}, {sk2}')
    p(f'v_mov_b32 {t2}, 0')
    p(f's_mov_b32 {b2}, {hx(SEL_OFF)}')
    p(f'buffer_store_dwordx2 {XF[0:2]}, {t2}, {rWs}, {b2} offen')
    p('k2_nopub:')
    for c in range(8):
        b = c % 4; rm = 0x3 if c < 4 else 0xc
        def ror(r):
            return (4*(b - r)) % 16
        r1,r2,r3 = (b+1)%4,(b+2)%4,(b+3)%4
        p(f'v_add_f32_dpp {Ta}, {ACC[4*c+r1]}, {ACC[4*c+b]} row_ror:{ror(r1)} row_mask:{rm:#x} bank_mask:{1<<b:#x}')
        p(f'v_mov_b32_dpp {Tb}, {ACC[4*c+r2]} row_ror:{ror(r2)} row_mask:{rm:#x} bank_mask:{1<<b:#x}')
        p(f'v_mov_b32_dpp {Tc}, {ACC[4*c+r3]} row_ror:{ror(r3)} row_mask:{rm:#x} bank_mask:{1<<b:#x}')
    p(f'v_add_f32 {Ta}, {Ta}, {Tb}')
    p(f'v_add_f32 {Ta}, {Ta}, {Tc}')
    p(f'ds_write_b32 {lwa}, {Ta}')
    p('s_waitcnt lgkmcnt(0)')
    p('s_barrier')
    p(f'ds_read_b128 {RD[0:4]}, {lra}')
    p(f'ds_read_b128 {RD[4:8]}, {lra} offset:16')
    p(f'ds_read_b64 {RD[8:10]}, {lra} offset:32')
    p('s_waitcnt lgkmcnt(0)')
    p(f'v_add_f32 {t}, {RD[0]}, {RD[1]}')
    p(f'v_add_f32 {t2}, {RD[5]}, {RD[6]}')
    p(f'v_add_f32 {t3}, {RD[2]}, {RD[3]}')
    p(f'v_add_f32 {Ta}, {RD[7]}, {RD[8]}')
    p(f'v_add_f32 {t}, {t}, {RD[4]}')
    p(f'v_add_f32 {t2}, {t2}, {RD[9]}')
    p(f'v_add_f32 {t}, {t}, {t3}')
    p(f'v_add_f32 {t2}, {t2}, {Ta}')
    bf16r(p, t, t, smask); bf16r(p, t2, t2, smask)
    silu(p, t, t, t3)
    bf16r(p, t, t, smask)
    p(f'v_mul_f32 {t}, {t}, {t2}')
    p(f'v_cvt_pk_bf16_f32 {t}, {t}, {t}')
    for v in range(4): p(f'v_and_b32 {HF[v]}, {t}, {msk[v]}')
    for c in range(4):
        p(f'v_mfma_f32_16x16x32_bf16 {ACC[4*c:4*c+4]}, {HF}, {FD[4*c:4*c+4]}, 0')
    for c in range(4):
        p(f'v_pk_add_f32 {ACC[4*c:4*c+2]}, {ACC[4*c:4*c+2]}, {ACC[4*c+2:4*c+4]}')
    for c in range(4):
        p(f'v_add_f32 {RD[c]}, {ACC[4*c]}, {ACC[4*c+1]}')
    p(f'v_permlane16_swap_b32 {RD[0]}, {RD[1]}')
    p(f'v_permlane16_swap_b32 {RD[2]}, {RD[3]}')
    p(f'v_add_f32 {RD[0]}, {RD[0]}, {RD[1]}')
    p(f'v_add_f32 {RD[2]}, {RD[2]}, {RD[3]}')
    p(f'buffer_atomic_add_f32 {RD[0]}, {yo}, {rWs}, {SO[7]} offen')
    p(f'buffer_atomic_add_f32 {RD[2]}, {yo}, {rWs}, {SO[7]} offen offset:8')
    p('k2_end:')
    p('s_endpgm')
    return p.finish(), desc('k2_kernel', max(V.hi,hi1), S.hi), NWG

def k3():
    p = Prog(); S = Alloc('s', 3); V = Alloc('v', 1); lane = Reg('v',0,1)
    head(p, 'k3_kernel')
    pWs = S(2,2); pO = S(2,2); sel = S(2,2); pSel = S(2,2)
    rWs = S(4,4); rO = S(4,4)
    sw = S(); st = S(); st2 = S(); sc = S(); scd = S(); stau = S(); smask = S(); ssg = S()
    SW = S(8); SX = S(16); SOo = S(16)
    n = V(); h = V(); col = V(); wo = V(); xo = V(); oo = V(); t = V(); t2 = V(); t3 = V(); stp = V(); hf = V(); tmp=[V(),V(),V()]
    B = V(16,4); A = V(16,4); Y = V(16,4); XG = V(16,4); G = V(16,4)
    y0 = V(); y1 = V(); xs = V()
    p('s_cmp_ge_u32 s2, 256')
    p('s_cbranch_scc1 k3_end')
    p(f's_load_dwordx2 {pWs}, s[0:1], 96')
    p(f's_load_dwordx2 {pO}, s[0:1], 80')
    p(f'v_lshrrev_b32 {t}, 6, v0')
    p(f'v_and_b32 {lane}, 63, v0')
    p(f'v_readfirstlane_b32 {sw}, {t}')
    p(f'v_and_b32 {n}, 31, {lane}')
    p(f'v_lshrrev_b32 {h}, 5, {lane}')
    p(f's_lshr_b32 {sc}, s2, 2')
    p(f's_and_b32 {st}, s2, 3')
    p(f's_mul_i32 {stau}, {st}, 5')
    p(f's_add_u32 {stau}, {stau}, {sw}')
    p(f's_lshl_b32 {st}, {stau}, 5')
    p(f'v_add_u32 {col}, {st}, {n}')
    p(f'v_sub_u32 {t}, 640, {col}')
    p(f's_sub_u32 {st}, 64, {sc}')
    p(f's_and_b32 {st}, {st}, 63')
    p(f's_mov_b32 {ssg}, {fl(1/2048)}')
    p(f's_mov_b32 {st2}, {fl(-1/2048)}')
    p(f's_cmp_lt_u32 {stau}, 10')
    p(f's_cselect_b32 {scd}, {sc}, {st}')
    p(f's_cselect_b32 {ssg}, {ssg}, {st2}')
    p(f'v_min_u32 {t}, {t}, {col}')
    p(f's_mul_i32 {st}, {scd}, {32*PITCH}')
    p(f's_add_u32 {st}, {st}, {hx(W_OFF)}')
    p(f'v_lshl_add_u32 {wo}, {t}, 2, {st}')
    p(f'v_mul_u32_u24 {t}, {4*PITCH}, {h}')
    p(f'v_add_u32 {wo}, {wo}, {t}')
    p(f'v_mul_u32_u24 {t}, {256*1280}, {h}')
    p(f's_mul_i32 {st}, {sc}, 1280')
    p(f'v_lshl_add_u32 {oo}, {col}, 1, {st}')
    p(f'v_add_u32 {oo}, {oo}, {t}')
    p(f'v_lshlrev_b32 {xo}, 1, {oo}')
    for i in range(8): p(f's_mov_b32 {SW[i]}, {(8*(i//2)+2*(i%2))*PITCH}')
    for R in range(16):
        k = 8*(R//4)+R%4
        p(f's_mov_b32 {SX[R]}, {hx(XG_OFF + k*64*2560)}')
        p(f's_mov_b32 {SOo[R]}, {hx(k*64*1280)}')
    p(f's_mov_b32 {smask}, 0xffff0000')
    p('s_waitcnt lgkmcnt(0)')
    srd(p, rWs, pWs, WS_SIZE); srd(p, rO, pO, 2048*1280)
    p(f's_add_u32 {pSel[0]}, {pWs[0]}, {hx(SEL_OFF)}')
    p(f's_addc_u32 {pSel[1]}, {pWs[1]}, 0')
    p(f's_load_dwordx2 {sel}, {pSel}, 0')
    for R in range(16):
        p(f'buffer_load_dword {B[R]}, {wo}, {rWs}, {SW[R//2]} offen offset:{PITCH*(R%2)}')
    for R in range(16):
        p(f'buffer_load_dword {XG[R]}, {xo}, {rWs}, {SX[R]} offen')
    p(f'v_lshl_add_u32 {t}, {n}, 6, {sc}')
    p(f'v_cvt_f32_u32 {stp}, {t}')
    p(f'v_mul_f32 {stp}, {ssg}, {stp}')
    p(f'v_cvt_f32_u32 {hf}, {h}')
    p(f'v_mul_f32 {hf}, 4.0, {hf}')
    gen_A(p, A, stp, None, None, hf, tmp)
    for kk in range(4):
        p(f's_waitcnt vmcnt({28-4*kk})')
        p(f'v_mfma_f32_32x32x16_f16 {Y}, {A[4*kk:4*kk+4]}, {B[4*kk:4*kk+4]}, {"0" if kk==0 else Y}')
    p('s_waitcnt vmcnt(0) lgkmcnt(0)')
    for R in range(16):
        p(f'v_lshlrev_b32 {G[R]}, 16, {XG[R]}')
        p(f'v_and_b32 {XG[R]}, {smask}, {XG[R]}')
    for tok in range(2):
        p(f's_and_b32 {st}, {sel[tok]}, 63')
        p(f's_cmp_lg_u32 {st}, {sc}')
        p(f's_cbranch_scc1 k3_skip{tok}')
        p(f'v_lshlrev_b32 {t}, 2, {col}')
        p(f'v_lshlrev_b32 {t2}, 1, {col}')
        p(f's_mov_b32 {st}, {hx(Y_OFF + tok*2560)}')
        p(f's_mov_b32 {st2}, {hx(Y_OFF + 5120 + tok*2560)}')
        p(f'buffer_load_dword {y0}, {t}, {rWs}, {st} offen')
        p(f'buffer_load_dword {y1}, {t}, {rWs}, {st2} offen')
        p(f's_mov_b32 {st}, {hx(XS_OFF + tok*1280)}')
        p(f'buffer_load_ushort {xs}, {t2}, {rWs}, {st} offen')
        p(f'v_mov_b32 {t}, {sel[tok]}')
        p(f'v_ashrrev_i32 {t2}, 31, {t}')
        p(f'v_not_b32 {t2}, {t2}')
        p(f'v_or_b32 {t2}, 0x80000000, {t2}')
        p(f'v_xor_b32 {t}, {t}, {t2}')
        p(f'v_and_b32 {t}, {smask}, {t}')
        p(f'v_mul_f32 {t}, {fl(-LOG2E)}, {t}')
        p(f'v_exp_f32 {t}, {t}')
        p(f'v_add_f32 {t}, 1.0, {t}')
        p(f'v_rcp_f32 {t}, {t}')
        bf16r(p, t, t, smask)
        p('s_waitcnt vmcnt(0)')
        p(f'v_add_f32 {y0}, {y0}, {y1}')
        bf16r(p, y0, y0, smask)
        p(f'v_mul_f32 {y0}, {y0}, {t}')
        bf16r(p, y0, y0, smask)
        p(f'v_lshlrev_b32 {xs}, 16, {xs}')
        p(f'v_add_f32 {y0}, {y0}, {xs}')
        bf16r(p, y0, y0, smask)
        silu(p, y0, y0, t)
        bf16r(p, y0, y0, smask)
        p(f's_bfe_u32 {st}, {sel[tok]}, 0x50006')
        p(f'v_lshlrev_b32 {t}, 2, {h}')
        p(f'v_sub_u32 {t}, {st}, {t}')
        for R in range(16):
            p(f'v_cmp_eq_u32 vcc, {8*(R//4)+R%4}, {t}')
            p(f'v_cndmask_b32 {G[R]}, {G[R]}, {y0}, vcc')
        p(f'k3_skip{tok}:')
    for R in range(16):
        p(f'v_fma_f32 {G[R]}, {Y[R]}, {G[R]}, {XG[R]}')
    for R in range(0,16,2):
        p(f'v_cvt_pk_bf16_f32 {G[R]}, {G[R]}, {G[R+1]}')
    for R in range(0,16,2):
        p(f'buffer_store_short {G[R]}, {oo}, {rO}, {SOo[R]} offen')
        p(f'buffer_store_short_d16_hi {G[R]}, {oo}, {rO}, {SOo[R+1]} offen')
    p('k3_end:')
    p('s_endpgm')
    return p.finish(), desc('k3_kernel', V.hi, S.hi)

def main(out):
    c1,d1 = k1(); c2,d2,n2 = k2(); c3,d3 = k3()
    hdr = f"""; FNet-mix + MoD block: three launches (row FFT / column FFT stage 1 + FFN / column FFT stage 2 + epilogue)
; @launch kernel=k1_kernel grid=(256,1,1) block=(512,1,1) lds=10240
; @launch kernel=k2_kernel grid=({n2},1,1) block=(640,1,1) lds=3072
; @launch kernel=k3_kernel grid=(256,1,1) block=(320,1,1) lds=0
.amdgcn_target "amdgcn-amd-amdhsa--gfx950"
.text
"""
    open(out,'w').write(hdr + c1 + c2 + c3 + '.section .rodata,"a"\n' + d1 + d2 + d3)

if __name__ == '__main__':
    main(sys.argv[1])
```

```python
from asmlib import *
def hx(x): return '0x%08x' % (x & 0xffffffff)
def k4(entries, nk, STAMP_OFF):
    p = Prog()
    p('.globl k9_kernel\n.p2align 8\n.type k9_kernel,@function\nk9_kernel:')
    p('s_cmp_ge_u32 s2, 1')
    p('s_cbranch_scc1 k9_end')
    p('s_memrealtime s[20:21]')
    p('s_load_dwordx2 s[4:5], s[0:1], 96')
    p('s_load_dwordx2 s[6:7], s[0:1], 88')
    p('s_waitcnt lgkmcnt(0)')
    p(f's_sub_u32 s6, s6, {512*nk}')
    p('s_subb_u32 s7, s7, 0')
    p('s_mov_b32 s8, s4\ns_mov_b32 s9, s5\ns_mov_b32 s11, 0x00020000')
    p('v_lshlrev_b32 v1, 5, v0')
    p('v_mov_b32 v2, 0')
    for i,(kid,lo,hi,st,mode) in enumerate(entries):
        base = STAMP_OFF + kid*4096*32
        p(f's_mov_b32 s10, {hx(base+hi*32)}')
        n = (hi-lo+255)//256
        for j in range(n):
            p(f's_mov_b32 s12, {hx(base+(lo+256*j)*32+4*st)}')
            p(f'buffer_load_dword v{8+j}, v1, s[8:11], s12 offen')
        p('s_waitcnt vmcnt(0)')
        p('v_mov_b32 v3, 0')
        for j in range(n):
            if mode=='min':
                p(f'v_cmp_ne_u32 vcc, 0, v{8+j}')
                p(f'v_not_b32 v{8+j}, v{8+j}')
                p(f'v_cndmask_b32 v{8+j}, 0, v{8+j}, vcc')
            p(f'v_max_u32 v3, v3, v{8+j}')
        p(f'global_atomic_umax v2, v3, s[6:7] offset:{4*i}')
    p('v_mov_b32 v3, s20')
    p(f'global_atomic_umax v2, v3, s[6:7] offset:{4*len(entries)}')
    p('k9_end:')
    p('s_endpgm')
    d = """.p2align 6
.amdhsa_kernel k9_kernel
  .amdhsa_next_free_vgpr 32
  .amdhsa_next_free_sgpr 32
  .amdhsa_accum_offset 32
  .amdhsa_group_segment_fixed_size 0
  .amdhsa_kernarg_size 104
  .amdhsa_user_sgpr_count 2
  .amdhsa_user_sgpr_kernarg_segment_ptr 1
  .amdhsa_system_sgpr_workgroup_id_x 1
.end_amdhsa_kernel
"""
    return p.finish(), d
```

```python
import sys, struct, math
from asmlib import *

def f2u(x): return struct.unpack('<I', struct.pack('<f', x))[0]
def hx(x): return '0x%08x' % (x & 0xffffffff)
def fl(x): return hx(f2u(x))

PITCH = 1408
Z_OFF   = 0
W_OFF   = 0x300000
XG_OFF  = 0x600000
KEY_OFF = 0xB00000
ST_OFF  = 0xB02000
Y_OFF   = 0xB08000
SEL_OFF = 0xB0C000
XS_OFF  = 0xB0C100
WS_SIZE = 0xC00000
NFFN = 54
LOG2E = 1.4426950408889634

def srd(p, D, base, nbytes):
    p(f's_mov_b32 {D[0]}, {base[0]}')
    p(f's_mov_b32 {D[1]}, {base[1]}')
    p(f's_mov_b32 {D[2]}, {hx(nbytes)}')
    p(f's_mov_b32 {D[3]}, 0x00020000')

def wave_sum(p, t, sdst):
    for m in ('quad_perm:[1,0,3,2] row_mask:0xf','quad_perm:[2,3,0,1] row_mask:0xf','row_half_mirror row_mask:0xf',
              'row_mirror row_mask:0xf','row_bcast:15 row_mask:0xa','row_bcast:31 row_mask:0xc'):
        p(f'v_add_f32_dpp {t}, {t}, {t} {m} bank_mask:0xf')
    p(f'v_readlane_b32 {sdst}, {t}, 63')

def bf16r(p, d, s, smask):
    p(f'v_cvt_pk_bf16_f32 {d}, {s}, {s}')
    p(f'v_and_b32 {d}, {smask}, {d}')

def silu(p, d, z, t):
    p(f'v_mul_f32 {t}, {fl(-LOG2E)}, {z}')
    p(f'v_exp_f32 {t}, {t}')
    p(f'v_add_f32 {t}, 1.0, {t}')
    p(f'v_rcp_f32 {t}, {t}')
    p(f'v_mul_f32 {d}, {z}, {t}')

def desc(name, nv, ns):
    if STAMP: ns = 100
    nv4 = (nv+3)//4*4
    return f""".p2align 6
.amdhsa_kernel {name}
  .amdhsa_next_free_vgpr {nv4}
  .amdhsa_next_free_sgpr {ns}
  .amdhsa_accum_offset {nv4}
  .amdhsa_group_segment_fixed_size 0
  .amdhsa_kernarg_size 104
  .amdhsa_user_sgpr_count 2
  .amdhsa_user_sgpr_kernarg_segment_ptr 1
  .amdhsa_system_sgpr_workgroup_id_x 1
  .amdhsa_float_denorm_mode_32 3
  .amdhsa_float_denorm_mode_16_64 3
.end_amdhsa_kernel
"""

import os
STAMP = bool(os.environ.get('STAMP'))
STAMP_OFF = 0x1000000
class Stamper:
    def __init__(self, p, kid, wpw):
        self.p=p; self.kid=kid; self.wpw=wpw
    def __call__(self, k):
        if STAMP: self.p(f's_memrealtime s[{80+2*k}:{81+2*k}]')
    def init(self):
        if STAMP:
            for k in range(1,8): self.p(f's_mov_b64 s[{80+2*k}:{81+2*k}], 0')
    def dump(self, pWs, sw):
        if not STAMP: return
        p=self.p
        p('s_waitcnt vmcnt(0) lgkmcnt(0)')
        self(7)
        p('s_waitcnt lgkmcnt(0)')
        p('s_mov_b64 exec, 1')
        p(f's_mul_i32 s96, s2, {self.wpw}')
        p(f's_add_u32 s96, s96, {sw}')
        p(f's_lshl_b32 s96, s96, 5')
        p(f's_add_u32 s96, s96, {hx(STAMP_OFF + self.kid*4096*32)}')
        p(f's_add_u32 s98, {pWs[0]}, s96')
        p(f's_addc_u32 s99, {pWs[1]}, 0')
        for k in range(8): p(f'v_mov_b32 v{4+k}, s{80+2*k}')
        p('v_mov_b32 v2, 0')
        p('global_store_dwordx4 v2, v[4:7], s[98:99]')
        p('global_store_dwordx4 v2, v[8:11], s[98:99] offset:16')

def head(p, name):
    p(f'.globl {name}\n.p2align 8\n.type {name},@function\n{name}:')

def k1():
    p = Prog(); V = Alloc('v', 1); S = Alloc('s', 3)
    head(p, 'k1_kernel')
    pX = S(2,2); pWr = S(2,2); pWs = S(2,2)
    rX = S(4,4); rWr = S(4,4); rWs = S(4,4)
    sw = S(); ssig = S(); st0 = S(); srow = S(); sxo = S(); st = S(); smask = S(); ssgn = S(); ssum = S()
    sp0 = S(); sp1 = S(); szo = S()
    lane = V(); l32 = V(); h = V(); o8 = V(); o4 = V(); t = V(); t2 = V(); t3 = V()
    X = V(6,2); WR = V(6,2); F = V(10,2); Dd = V(10,2)
    BF = V(16,4)
    TC = V(12,2); TS = V(12,2); A2 = V(12,4)
    Aa = V(8,4); Ab = V(8,4)
    Tr = V(16,4); Ti = V(16,4); O = V(16,4); P = V(12,4)
    lw = V(); lr = V(); zoff = V(); mean = V(); mb = V(2,2); rden = mb[1]; mb0 = mb[0]
    XG = V(12,4)
    p('s_cmp_ge_u32 s2, 256')
    p('s_cbranch_scc1 k1_end')
    T = Stamper(p, 0, 8); T(0); T.init()
    p(f's_load_dwordx2 {pX}, s[0:1], 0')
    p(f's_load_dwordx2 {pWr}, s[0:1], 48')
    p(f's_load_dwordx2 {pWs}, s[0:1], 96')
    p(f'v_lshrrev_b32 {t}, 6, v0')
    p(f'v_and_b32 {lane}, 63, v0')
    p(f'v_readfirstlane_b32 {sw}, {t}')
    p(f'v_lshlrev_b32 {o8}, 3, {lane}')
    p(f'v_lshlrev_b32 {o4}, 2, {lane}')
    p(f'v_and_b32 {l32}, 31, {lane}')
    p(f'v_lshrrev_b32 {h}, 5, {lane}')
    p(f's_lshr_b32 {ssig}, {sw}, 1')
    p(f's_lshl_b32 {st}, s2, 2')
    p(f's_add_u32 {ssig}, {ssig}, {st}')
    p(f's_and_b32 {st0}, {sw}, 1')
    p(f's_lshl_b32 {st}, {st0}, 10')
    p(f's_add_u32 {srow}, {ssig}, {st}')
    p(f's_mul_i32 {sxo}, {srow}, 1280')
    p(f's_mov_b32 {smask}, 0xffff0000')
    p('s_waitcnt lgkmcnt(0)')
    T(1)
    srd(p, rX, pX, 2048*1280); srd(p, rWr, pWr, 1280); srd(p, rWs, pWs, WS_SIZE)
    p(f'buffer_load_dwordx2 {X[0:2]}, {o8}, {rX}, {sxo} offen')
    p(f'buffer_load_dwordx2 {X[2:4]}, {o8}, {rX}, {sxo} offen offset:512')
    p(f'buffer_load_dword {X[4]}, {o4}, {rX}, {sxo} offen offset:1024')
    p(f'buffer_load_dwordx2 {WR[0:2]}, {o8}, {rWr}, 0 offen')
    p(f'buffer_load_dwordx2 {WR[2:4]}, {o8}, {rWr}, 0 offen offset:512')
    p(f'buffer_load_dword {WR[4]}, {o4}, {rWr}, 0 offen offset:1024')
    p('s_cmp_ge_u32 s2, 5')
    p('s_cbranch_scc1 k1_nozero')
    p(f's_lshl_b32 {st}, s2, 11')
    p(f's_add_u32 {st}, {st}, {hx(Y_OFF)}')
    p(f'v_lshlrev_b32 {t}, 2, v0')
    p(f'v_mov_b32 {t2}, 0')
    p(f'buffer_store_dword {t2}, {t}, {rWs}, {st} offen')
    p('k1_nozero:')
    e1f = O[0]; hf = O[1]; ang = O[2]; c0 = O[3]; c1 = O[4]; s0 = O[5]; s1 = O[6]; stp = O[7]; base = O[8]; sg = O[9]
    p(f'v_cvt_f32_u32 {e1f}, {l32}')
    p(f'v_cvt_f32_u32 {hf}, {h}')
    p(f'v_mul_f32 {stp}, {fl(1/32)}, {e1f}')
    p(f'v_mul_f32 {base}, {hf}, {stp}')
    p(f'v_mul_f32 {base}, {fl(8.0)}, {base}')
    p(f'v_and_b32 {sg}, 1, {l32}')
    p(f'v_mul_u32_u24 {sg}, 0x8000, {sg}')
    p(f'v_lshl_or_b32 {sg}, {sg}, 16, {sg}')
    for v in range(4):
        p(f'v_cos_f32 {c0}, {base}'); p(f'v_sin_f32 {s0}, {base}')
        p(f'v_add_f32 {base}, {base}, {stp}')
        p(f'v_cos_f32 {c1}, {base}'); p(f'v_sin_f32 {s1}, {base}')
        p(f'v_add_f32 {base}, {base}, {stp}')
        p(f'v_cvt_pk_f16_f32 {BF[v]}, {c0}, {c1}')
        p(f'v_cvt_pk_f16_f32 {BF[8+v]}, -{s0}, -{s1}')
        p(f'v_xor_b32 {BF[4+v]}, {sg}, {BF[v]}')
        p(f'v_xor_b32 {BF[12+v]}, {sg}, {BF[8+v]}')
    p(f'v_mul_f32 {stp}, {fl(1/640)}, {e1f}')
    p(f'v_mul_f32 {base}, 4.0, {hf}')
    for R in range(12):
        k = 8*(R//4)+R%4
        p(f'v_add_f32 {ang}, {fl(float(k))}, {base}')
        p(f'v_mul_f32 {ang}, {ang}, {stp}')
        p(f'v_cos_f32 {TC[R]}, {ang}'); p(f'v_sin_f32 {TS[R]}, {ang}')
    p(f'v_lshrrev_b32 {t}, 1, {l32}')
    p(f'v_cvt_f32_u32 {stp}, {t}')
    p(f'v_mul_f32 {stp}, {fl(1/20)}, {stp}')
    p(f'v_and_b32 {t}, 1, {l32}')
    p(f'v_cvt_f32_u32 {c1}, {t}')
    p(f'v_mul_f32 {c1}, {fl(0.25)}, {c1}')
    p(f'v_cmp_eq_u32 vcc, 0, {h}')
    for R in range(12):
        k = 8*(R//4)+R%4
        p(f'v_add_f32 {ang}, {fl(float(k))}, {base}')
        p(f'v_fma_f32 {ang}, {ang}, {stp}, {c1}')
        p(f'v_cos_f32 {c0}, {ang}'); p(f'v_sin_f32 {s0}, {ang}')
        p(f'v_cvt_pk_f16_f32 {A2[R]}, {c0}, {s0}')
        if R >= 8: p(f'v_cndmask_b32 {A2[R]}, 0, {A2[R]}, vcc')
    p(f's_mul_i32 {st}, {sw}, 1280')
    p(f'v_add_u32 {lw}, {st}, {o8}')
    p(f'v_bfe_u32 {t}, {lane}, 2, 2')
    p(f'v_lshl_add_u32 {t}, {h}, 3, {t}')
    p(f'v_mul_u32_u24 {t}, 40, {t}')
    p(f'v_and_b32 {t2}, 3, {lane}')
    p(f'v_lshlrev_b32 {t2}, 3, {t2}')
    p(f'v_and_b32 {t3}, 16, {lane}')
    p(f'v_cmp_eq_u32 vcc, 0, {t3}')
    p(f'v_cndmask_b32 {t2}, 32, {t2}, vcc')
    p(f's_and_b32 {st}, {sw}, 6')
    p(f's_mul_i32 {st}, {st}, 1280')
    p(f'v_add3_u32 {lr}, {t}, {t2}, {st}')
    p(f's_cmp_eq_u32 {st0}, 0')
    p(f's_cselect_b32 {ssgn}, 0x3c003c00, 0xbc00bc00') if False else None
    p(f's_mov_b32 {ssgn}, 0x3c003c00')
    p(f's_mov_b32 {st}, 0xbc00bc00')
    p(f's_cselect_b32 {ssgn}, {ssgn}, {st}')
    p(f'v_lshlrev_b32 {zoff}, 8, {h}')
    p(f'v_lshl_add_u32 {zoff}, {l32}, 2, {zoff}')
    p(f's_mul_i32 {szo}, {srow}, {PITCH}')
    p(f's_mov_b32 {sp0}, 0x05040100')
    p(f's_mov_b32 {sp1}, 0x07060302')
    T(2)
    p('s_waitcnt vmcnt(0)')
    T(3)
    for j in range(5):
        p(f'v_lshlrev_b32 {F[2*j]}, 16, {X[j]}')
        p(f'v_and_b32 {F[2*j+1]}, {smask}, {X[j]}')
    p(f'v_pk_add_f32 {Dd[0:2]}, {F[0:2]}, {F[2:4]}')
    p(f'v_pk_add_f32 {Dd[2:4]}, {F[4:6]}, {F[6:8]}')
    p(f'v_pk_add_f32 {Dd[0:2]}, {Dd[0:2]}, {F[8:10]}')
    p(f'v_pk_add_f32 {Dd[0:2]}, {Dd[0:2]}, {Dd[2:4]}')
    p(f'v_add_f32 {t}, {Dd[0]}, {Dd[1]}')
    wave_sum(p, t, ssum)
    p(f'v_mov_b32 {mean}, {ssum}')
    p(f'v_mul_f32 {mean}, {fl(1/640)}, {mean}')
    bf16r(p, mb0, mean, smask)
    for j in range(10): p(f'v_sub_f32 {Dd[j]}, {F[j]}, {mb0}')
    p(f'v_mul_f32 {t}, {Dd[0]}, {Dd[0]}')
    p(f'v_mul_f32 {t2}, {Dd[1]}, {Dd[1]}')
    for j in range(2,10,2):
        p(f'v_fmac_f32 {t}, {Dd[j]}, {Dd[j]}')
        p(f'v_fmac_f32 {t2}, {Dd[j+1]}, {Dd[j+1]}')
    p(f'v_add_f32 {t}, {t}, {t2}')
    wave_sum(p, t, ssum)
    p(f'v_sub_f32 {mean}, {mean}, {mb0}')
    p(f'v_mul_f32 {mean}, {mean}, {mean}')
    p(f'v_mov_b32 {t}, {ssum}')
    p(f'v_mul_f32 {t}, {fl(1/640)}, {t}')
    p(f'v_sub_f32 {t}, {t}, {mean}')
    p(f'v_max_f32 {t}, 0, {t}')
    bf16r(p, t, t, smask)
    p(f'v_add_f32 {t}, {fl(1e-5)}, {t}')
    bf16r(p, t, t, smask)
    p(f'v_sqrt_f32 {t}, {t}')
    bf16r(p, t, t, smask)
    p(f'v_rcp_f32 {rden}, {t}')
    XN = P
    for j in range(5):
        p(f'v_cvt_pk_bf16_f32 {XN[j]}, {Dd[2*j]}, {Dd[2*j+1]}')
    for j in range(5):
        p(f'v_lshlrev_b32 {Dd[2*j]}, 16, {XN[j]}')
        p(f'v_and_b32 {Dd[2*j+1]}, {smask}, {XN[j]}')
    for j in range(10): p(f'v_mul_f32 {Dd[j]}, {Dd[j]}, {rden}')
    for j in range(5):
        p(f'v_cvt_pk_bf16_f32 {XN[j]}, {Dd[2*j]}, {Dd[2*j+1]}')
    for j in range(5):
        p(f'v_lshlrev_b32 {F[2*j]}, 16, {XN[j]}')
        p(f'v_and_b32 {F[2*j+1]}, {smask}, {XN[j]}')
    H = P[6:12]
    for j in range(5):
        p(f'v_cvt_pk_f16_f32 {H[j]}, {F[2*j]}, {F[2*j+1]}')
    p(f'ds_write_b64 {lw}, {H[0:2]}')
    p(f'ds_write_b64 {lw}, {H[2:4]} offset:512')
    p(f'v_sub_u32 {t}, {lw}, {o4}')
    p(f'ds_write_b32 {t}, {H[4]} offset:1024')
    for j in range(5):
        p(f'v_lshlrev_b32 {Dd[2*j]}, 16, {WR[j]}')
        p(f'v_and_b32 {Dd[2*j+1]}, {smask}, {WR[j]}')
    p(f'v_mul_f32 {t}, {Dd[0]}, {F[0]}')
    p(f'v_mul_f32 {t2}, {Dd[1]}, {F[1]}')
    for j in range(2,10,2):
        p(f'v_fmac_f32 {t}, {Dd[j]}, {F[j]}')
        p(f'v_fmac_f32 {t2}, {Dd[j+1]}, {F[j+1]}')
    p(f'v_add_f32 {t}, {t}, {t2}')
    T(4)
    p('s_waitcnt lgkmcnt(0)')
    p('s_barrier')
    T(5)
    for kk in range(2):
        for u in range(2):
            p(f'ds_read_b64_tr_b16 {Aa[4*kk+2*u:4*kk+2*u+2]}, {lr} offset:{640*kk+160*u}')
            p(f'ds_read_b64_tr_b16 {Ab[4*kk+2*u:4*kk+2*u+2]}, {lr} offset:{1280+640*kk+160*u}')
    wave_sum(p, t, ssum)
    p(f'v_mov_b32 {t}, {ssum}')
    bf16r(p, t, t, smask)
    p(f'v_ashrrev_i32 {t2}, 31, {t}')
    p(f'v_or_b32 {t2}, 0x80000000, {t2}')
    p(f'v_xor_b32 {t}, {t}, {t2}')
    p(f'v_and_b32 {t}, {smask}, {t}')
    p(f'v_or_b32 {t}, {srow}, {t}')
    p(f'v_mov_b32 {t2}, 0')
    p(f's_lshl_b32 {st}, {srow}, 2')
    p(f's_add_u32 {st}, {st}, {hx(KEY_OFF)}')
    p(f's_lshl_b32 {ssum}, {srow}, 3')
    p(f's_add_u32 {ssum}, {ssum}, {hx(ST_OFF)}')
    p('s_mov_b64 exec, 1')
    p(f'buffer_store_dword {t}, {t2}, {rWs}, {st} offen')
    p(f'buffer_store_dwordx2 {mb}, {t2}, {rWs}, {ssum} offen')
    p('s_mov_b64 exec, -1')
    p('s_waitcnt lgkmcnt(0)')
    for j in range(8):
        p(f'v_pk_fma_f16 {Aa[j]}, {Ab[j]}, {ssgn}, {Aa[j]}')
    p(f'v_mfma_f32_32x32x16_f16 {Tr}, {Aa[0:4]}, {BF[0:4]}, 0')
    p(f'v_mfma_f32_32x32x16_f16 {Ti}, {Aa[0:4]}, {BF[8:12]}, 0')
    p(f'v_mfma_f32_32x32x16_f16 {Tr}, {Aa[4:8]}, {BF[4:8]}, {Tr}')
    p(f'v_mfma_f32_32x32x16_f16 {Ti}, {Aa[4:8]}, {BF[12:16]}, {Ti}')
    for j in range(10): p(f'v_mul_f32 {Dd[j]}, {fl(-LOG2E)}, {F[j]}')
    for j in range(10): p(f'v_exp_f32 {Dd[j]}, {Dd[j]}')
    for j in range(10): p(f'v_add_f32 {Dd[j]}, 1.0, {Dd[j]}')
    for j in range(10): p(f'v_rcp_f32 {Dd[j]}, {Dd[j]}')
    for j in range(10): p(f'v_mul_f32 {Dd[j]}, {F[j]}, {Dd[j]}')
    for j in range(5):
        p(f'v_cvt_pk_bf16_f32 {WR[j]}, {Dd[2*j]}, {Dd[2*j+1]}')
    for j in range(5):
        p(f'v_perm_b32 {XG[2*j]}, {X[j]}, {WR[j]}, {sp0}')
        p(f'v_perm_b32 {XG[2*j+1]}, {X[j]}, {WR[j]}, {sp1}')
    p(f's_lshl_b32 {st}, {sxo}, 1')
    p(f's_add_u32 {st}, {st}, {hx(XG_OFF)}')
    p(f'v_lshlrev_b32 {t}, 4, {lane}')
    p(f'buffer_store_dwordx4 {XG[0:4]}, {t}, {rWs}, {st} offen')
    p(f'buffer_store_dwordx4 {XG[4:8]}, {t}, {rWs}, {st} offen offset:1024')
    p(f'buffer_store_dwordx2 {XG[8:10]}, {o8}, {rWs}, {st} offen offset:2048')
    for R in range(0,12,2):
        a=O[R:R+2];
        p(f'v_pk_mul_f32 {O[0:2]}, {Tr[R:R+2]}, {TC[R:R+2]}')
        p(f'v_pk_mul_f32 {O[2:4]}, {Ti[R:R+2]}, {TC[R:R+2]}')
        p(f'v_pk_fma_f32 {O[0:2]}, {Ti[R:R+2]}, {TS[R:R+2]}, {O[0:2]}')
        p(f'v_pk_fma_f32 {O[2:4]}, {Tr[R:R+2]}, {TS[R:R+2]}, {O[2:4]} neg_lo:[1,0,0] neg_hi:[1,0,0]')
        p(f'v_cvt_pk_f16_f32 {P[R]}, {O[0]}, {O[2]}')
        p(f'v_cvt_pk_f16_f32 {P[R+1]}, {O[1]}, {O[3]}')
    p(f'v_mfma_f32_32x32x16_f16 {O}, {A2[0:4]}, {P[0:4]}, 0')
    p(f'v_mfma_f32_32x32x16_f16 {O}, {A2[4:8]}, {P[4:8]}, {O}')
    p(f'v_mfma_f32_32x32x16_f16 {O}, {A2[8:12]}, {P[8:12]}, {O}')
    for m in range(6):
        p(f'v_cvt_pk_f16_f32 {Tr[m]}, {O[2*m]}, {O[2*m+1]}')
    for m in range(6):
        if m == 5: p('s_mov_b32 exec_hi, 0')
        p(f'buffer_store_dword {Tr[m]}, {zoff}, {rWs}, {szo} offen offset:{512*(m//2)+128*(m%2)}')
    T(6); T.dump(pWs, sw)
    p('k1_end:')
    p('s_endpgm')
    return p.finish(), desc('k1_kernel', V.hi, S.hi)

def gen_A(p, A, stp, base, ph, hf, tmp):
    ang, c0, s0 = tmp
    for R in range(16):
        k = 8*(R//4)+R%4
        p(f'v_add_f32 {ang}, {fl(float(k))}, {hf}')
        if ph is None: p(f'v_mul_f32 {ang}, {ang}, {stp}')
        else: p(f'v_fma_f32 {ang}, {ang}, {stp}, {ph}')
        p(f'v_cos_f32 {c0}, {ang}'); p(f'v_sin_f32 {s0}, {ang}')
        p(f'v_cvt_pk_f16_f32 {A[R]}, {c0}, {s0}')

def top2_merge_dpp(p, m1, m2, a, b, mod):
    p(f'v_mov_b32_dpp {a}, {m1} {mod}')
    p(f'v_mov_b32_dpp {b}, {m2} {mod}')
    p(f'v_max_u32 {m2}, {m2}, {b}')
    p(f'v_med3_u32 {m2}, {m1}, {a}, {m2}')
    p(f'v_max_u32 {m1}, {m1}, {a}')

def k2():
    p = Prog(); S = Alloc('s', 3)
    head(p, 'k2_kernel')
    NWG = NFFN + 128 + 1
    pWs = S(2,2); pX = S(2,2); pG = S(2,2); pU = S(2,2); pD = S(2,2)
    rWs = S(4,4); rX = S(4,4); rW = S(4,4); rD = S(4,4)
    sw = S(); st = S(); st2 = S(); sj = S(); st0 = S(); ss2 = S(); sct = S(); sth = S(); smask = S()
    SO = S(16)
    sp0 = S(); sp1 = S(); sk1 = S(); sk2 = S()
    p(f's_cmp_ge_u32 s2, {NWG}')
    p('s_cbranch_scc1 k2_end')
    T = Stamper(p, 1, 10); T(0); T.init()
    p(f's_load_dwordx2 {pWs}, s[0:1], 96')
    p(f's_load_dwordx2 {pX}, s[0:1], 0')
    p(f's_load_dwordx2 {pG}, s[0:1], 56')
    p(f's_load_dwordx2 {pU}, s[0:1], 64')
    p(f's_load_dwordx2 {pD}, s[0:1], 72')
    p(f'v_lshrrev_b32 v1, 6, v0')
    p(f'v_and_b32 v0, 63, v0')
    p(f'v_readfirstlane_b32 {sw}, v1')
    p(f's_cmp_lt_u32 s2, {NFFN}')
    p('s_cbranch_scc1 k2_ffn')
    V = Alloc('v', 1); lane = Reg('v',0,1)
    n = V(); h = V(); lo = V(); so = V(); t = V(); t2 = V(); stp = V(); ph = V(); hf = V(); tmp = [V(),V(),V()]
    B = V(16,4); A = V(16,4); Dacc = V(16,4); Pk = V(8)
    p(f'v_and_b32 {n}, 31, {lane}')
    p(f'v_lshrrev_b32 {h}, 5, {lane}')
    p(f's_sub_u32 {sj}, s2, {NFFN}')
    p(f's_and_b32 {sth}, {sw}, 1')
    for i in range(16):
        p(f's_mov_b32 {SO[i]}, {hx((8*(i//4)+i%4)*32*PITCH)}')
    p(f's_cmp_eq_u32 {sj}, 128')
    p('s_cbranch_scc1 k2_special')
    p(f's_bfe_u32 {st0}, {sj}, 0x10001')
    p(f's_lshr_b32 {ss2}, {sj}, 2')
    p(f's_and_b32 {st}, {sj}, 1')
    p(f's_mul_i32 {st}, {st}, 5')
    p(f's_lshr_b32 {sct}, {sw}, 1')
    p(f's_add_u32 {sct}, {sct}, {st}')
    p(f's_mul_i32 {st}, {ss2}, {PITCH}')
    p(f's_lshl_b32 {st2}, {sct}, 7')
    p(f's_add_u32 {st}, {st}, {st2}')
    p(f'v_lshl_add_u32 {t}, {n}, 2, {st}')
    p('s_branch k2_common')
    p('k2_special:')
    p(f's_cmp_ge_u32 {sw}, 4')
    p('s_cbranch_scc1 k2_end')
    p(f's_lshr_b32 {st0}, {sw}, 1')
    p(f'v_mul_u32_u24 {t}, {PITCH}, {n}')
    p(f'v_add_u32 {t}, 1280, {t}')
    p('k2_common:')
    p(f'v_mul_u32_u24 {t2}, {4*32*PITCH}, {h}')
    p(f'v_add_u32 {t}, {t}, {t2}')
    p(f's_mul_i32 {st}, {st0}, {1024*PITCH}')
    p(f'v_add_u32 {lo}, {st}, {t}')
    p(f's_lshl_b32 {st}, {sth}, 5')
    p(f's_add_u32 {st}, {st}, {st0}')
    p(f's_mul_i32 {st}, {st}, {32*PITCH}')
    p(f's_add_u32 {st}, {st}, {hx(W_OFF)}')
    p(f'v_add_u32 {so}, {st}, {t}')
    p('s_waitcnt lgkmcnt(0)')
    T(1)
    srd(p, rWs, pWs, WS_SIZE)
    for i in range(16):
        p(f'buffer_load_dword {B[i]}, {lo}, {rWs}, {SO[i]} offen')
    p(f's_lshl_b32 {st}, {sth}, 5')
    p(f's_add_u32 {st}, {st}, {st0}')
    p(f'v_and_b32 {t}, 30, {n}')
    p(f'v_add_u32 {t}, {st}, {t}')
    p(f'v_cvt_f32_u32 {stp}, {t}')
    p(f'v_mul_f32 {stp}, {fl(1/64)}, {stp}')
    p(f'v_and_b32 {t}, 1, {n}')
    p(f'v_cvt_f32_u32 {ph}, {t}')
    p(f'v_mul_f32 {ph}, {fl(0.25)}, {ph}')
    p(f'v_cvt_f32_u32 {hf}, {h}')
    p(f'v_mul_f32 {hf}, 4.0, {hf}')
    gen_A(p, A, stp, None, ph, hf, tmp)
    T(2)
    for kk in range(4):
        p(f's_waitcnt vmcnt({12-4*kk})')
        if kk==3: T(3)
        p(f'v_mfma_f32_32x32x16_f16 {Dacc}, {A[4*kk:4*kk+4]}, {B[4*kk:4*kk+4]}, {"0" if kk==0 else Dacc}')
    for m in range(8):
        p(f'v_cvt_pk_f16_f32 {Pk[m]}, {Dacc[2*m]}, {Dacc[2*m+1]}')
    for m in range(8):
        p(f'buffer_store_dword {Pk[m]}, {so}, {rWs}, {SO[4*(m//2)+2*(m%2)]} offen')
    T(6); T.dump(pWs, sw)
    p('s_endpgm')
    hi1 = V.hi
    V = Alloc('v', 1)
    n = V(); g = V(); t = V(); t2 = V(); t3 = V(); m1 = V(); m2 = V(); ko = V(); wo = V(); do = V(); xo = V(); lwa = V(); lra = V(); yo = V()
    msk = V(4,4)
    KY = V(32,4); L = V(32,4); LD = V(16,4); FR = KY; FD = V(16,4)
    XR = V(4,4); STt = V(2,2); XF = V(8,2); XA = V(4,4)
    ACC = L
    Ta = V(); Tb = V(); Tc = V(); RD = V(12,4); HF = V(4,4)
    p('k2_ffn:')
    p(f'v_and_b32 {n}, 15, {lane}')
    p(f'v_lshrrev_b32 {g}, 4, {lane}')
    p(f'v_lshlrev_b32 {ko}, 4, {lane}')
    sw5 = sj; smat = st0
    p(f's_cmp_ge_u32 {sw}, 5')
    p(f's_cselect_b32 {smat}, 1, 0')
    p(f's_mul_i32 {st}, {smat}, 5')
    p(f's_sub_u32 {sw5}, {sw}, {st}')
    p(f'v_lshrrev_b32 {t}, 2, {n}')
    p(f'v_lshlrev_b32 {t}, 5, {t}')
    p(f'v_lshl_add_u32 {t}, {g}, 3, {t}')
    p(f's_lshl_b32 {st}, {sw5}, 7')
    p(f'v_add_u32 {t}, {st}, {t}')
    p(f'v_mul_u32_u24 {wo}, 3456, {t}')
    p(f'v_and_b32 {t}, 3, {n}')
    p(f's_lshl_b32 {st}, s2, 6')
    p(f'v_lshl_add_u32 {t}, {t}, 4, {st}')
    p(f'v_add_u32 {wo}, {wo}, {t}')
    p(f'v_mul_u32_u24 {do}, {8*1280}, {g}')
    p(f's_mul_i32 {st}, s2, {32*1280}')
    p(f's_lshl_b32 {st2}, {sw}, 7')
    p(f's_add_u32 {st}, {st}, {st2}')
    p(f'v_lshl_add_u32 {t}, {n}, 3, {st}')
    p(f'v_add_u32 {do}, {do}, {t}')
    for j in range(4): p(f's_mov_b32 {SO[j]}, {2*j*3456}')
    p(f's_mov_b32 {SO[4]}, {hx(KEY_OFF)}')
    p(f's_mov_b32 {SO[5]}, {hx(KEY_OFF+4096)}')
    p(f's_mov_b32 {SO[6]}, 5120')
    p(f's_mov_b32 {smask}, 0xffff0000')
    p(f's_mov_b32 {sp0}, 0x05040100')
    p(f's_mov_b32 {sp1}, 0x07060302')
    p('s_waitcnt lgkmcnt(0)')
    T(1)
    srd(p, rWs, pWs, WS_SIZE)
    for j in range(8):
        p(f'buffer_load_dwordx4 {KY[4*j:4*j+4]}, {ko}, {rWs}, {SO[4+j//4]} offen offset:{1024*(j%4)}')
    p(f's_cmp_eq_u32 {smat}, 0')
    p(f's_cselect_b32 {rW[0]}, {pG[0]}, {pU[0]}')
    p(f's_cselect_b32 {rW[1]}, {pG[1]}, {pU[1]}')
    p(f's_mov_b32 {rW[2]}, {640*3456}')
    p(f's_mov_b32 {rW[3]}, 0x00020000')
    srd(p, rD, pD, 1728*1280); srd(p, rX, pX, 2048*1280)
    for j in range(8):
        p(f'buffer_load_dwordx4 {L[4*j:4*j+4]}, {wo}, {rW}, {SO[j//2]} offen offset:{3456*(j%2)}')
    for j in range(8):
        p(f'buffer_load_dwordx2 {LD[2*j:2*j+2]}, {do}, {rD}, {SO[6] if j>=4 else 0} offen offset:{1280*(j%4)}')
    p(f'v_and_b32 {t}, 3, {n}')
    p(f'v_lshlrev_b32 {t}, 6, {t}')
    p(f'v_lshl_add_u32 {t}, {g}, 4, {t}')
    p(f's_lshl_b32 {st}, {sw5}, 8')
    p(f'v_add_u32 {xo}, {st}, {t}')
    p(f'v_mul_u32_u24 {lwa}, 48, {lane}')
    p(f's_lshl_b32 {st}, {sw}, 2')
    p(f'v_add_u32 {lwa}, {st}, {lwa}')
    p(f'v_lshrrev_b32 {t}, 3, {n}')
    p(f'v_bfe_u32 {t2}, {n}, 2, 1')
    p(f'v_lshl_add_u32 {t}, {t2}, 1, {t}')
    p(f'v_lshlrev_b32 {t}, 4, {t}')
    p(f'v_and_b32 {t2}, 3, {n}')
    p(f'v_lshl_add_u32 {t}, {t2}, 2, {t}')
    p(f'v_add_u32 {t}, {t}, {g}')
    p(f'v_mul_u32_u24 {lra}, 48, {t}')
    p(f'v_and_b32 {t}, 1, {n}')
    p(f'v_cmp_eq_u32 vcc, 0, {t}')
    p(f'v_mov_b32 {t2}, 0xffff')
    p(f'v_mov_b32 {t3}, {smask}')
    p(f'v_cndmask_b32 {t2}, {t3}, {t2}, vcc')
    p(f'v_bfe_u32 {t}, {n}, 1, 2')
    for v in range(4):
        p(f'v_cmp_eq_u32 vcc, {v}, {t}')
        p(f'v_cndmask_b32 {msk[v]}, 0, {t2}, vcc')
    p(f'v_lshrrev_b32 {t}, 1, {g}')
    p(f'v_mul_u32_u24 {yo}, 2560, {t}')
    p(f'v_and_b32 {t}, 1, {g}')
    p(f'v_lshl_add_u32 {t}, {n}, 2, {t}')
    p(f'v_lshl_add_u32 {yo}, {t}, 2, {yo}')
    p(f's_and_b32 {st}, s2, 1')
    p(f's_mul_i32 {st}, {st}, 5120')
    p(f's_lshl_b32 {st2}, {sw}, 8')
    p(f's_add_u32 {SO[7]}, {st}, {st2}')
    p(f's_add_u32 {SO[7]}, {SO[7]}, {hx(Y_OFF)}')
    p('s_waitcnt vmcnt(16)')
    T(2)
    p(f'v_max_u32 {m1}, {KY[0]}, {KY[1]}')
    p(f'v_min_u32 {m2}, {KY[0]}, {KY[1]}')
    for j in range(2,32):
        p(f'v_med3_u32 {m2}, {m1}, {m2}, {KY[j]}')
        p(f'v_max_u32 {m1}, {m1}, {KY[j]}')
    for mod in ('quad_perm:[1,0,3,2]','quad_perm:[2,3,0,1]','row_half_mirror','row_mirror'):
        top2_merge_dpp(p, m1, m2, t, t2, mod+' row_mask:0xf bank_mask:0xf')
    a1=SO[8]; a2=SO[9]; b1=SO[10]; b2=SO[11]
    p(f'v_readlane_b32 {sk1}, {m1}, 0')
    p(f'v_readlane_b32 {sk2}, {m2}, 0')
    for ln in (16,32,48):
        p(f'v_readlane_b32 {b1}, {m1}, {ln}')
        p(f'v_readlane_b32 {b2}, {m2}, {ln}')
        p(f's_max_u32 {sk2}, {sk2}, {b2}')
        p(f's_min_u32 {a1}, {sk1}, {b1}')
        p(f's_max_u32 {sk2}, {sk2}, {a1}')
        p(f's_max_u32 {sk1}, {sk1}, {b1}')
    p(f's_and_b32 {a1}, {sk1}, 2047')
    p(f's_and_b32 {a2}, {sk2}, 2047')
    p(f'v_and_b32 {t}, 4, {n}')
    p(f'v_cmp_eq_u32 vcc, 0, {t}')
    p(f'v_mov_b32 {t}, {a1}')
    p(f'v_mov_b32 {t2}, {a2}')
    p(f'v_cndmask_b32 {t}, {t2}, {t}, vcc')
    p(f'v_mul_u32_u24 {t2}, 1280, {t}')
    p(f'v_add_u32 {t2}, {t2}, {xo}')
    p(f'v_lshlrev_b32 {t}, 3, {t}')
    p(f's_mov_b32 {b1}, {hx(ST_OFF)}')
    p(f'buffer_load_dwordx4 {XR}, {t2}, {rX}, 0 offen')
    p(f'buffer_load_dwordx2 {STt}, {t}, {rWs}, {b1} offen')
    T(3)
    p('s_waitcnt vmcnt(10)')
    T(4)
    for pp in range(4):
        for e in range(2):
            c = 2*pp+e
            for v in range(4):
                p(f'v_perm_b32 {FR[4*c+v]}, {L[4*(2*v+1)+pp]}, {L[4*(2*v)+pp]}, {sp1 if e else sp0}')
    p('s_waitcnt vmcnt(2)')
    for pp in range(2):
        for e in range(2):
            c = 2*pp+e
            for v in range(4):
                p(f'v_perm_b32 {FD[4*c+v]}, {LD[2*(2*v+1)+pp]}, {LD[2*(2*v)+pp]}, {sp1 if e else sp0}')
    p('s_waitcnt vmcnt(0)')
    T(5)
    for j in range(4):
        p(f'v_lshlrev_b32 {XF[2*j]}, 16, {XR[j]}')
        p(f'v_and_b32 {XF[2*j+1]}, {smask}, {XR[j]}')
    for j in range(8): p(f'v_sub_f32 {XF[j]}, {XF[j]}, {STt[0]}')
    for j in range(4): p(f'v_cvt_pk_bf16_f32 {XA[j]}, {XF[2*j]}, {XF[2*j+1]}')
    for j in range(4):
        p(f'v_lshlrev_b32 {XF[2*j]}, 16, {XA[j]}')
        p(f'v_and_b32 {XF[2*j+1]}, {smask}, {XA[j]}')
    for j in range(8): p(f'v_mul_f32 {XF[j]}, {XF[j]}, {STt[1]}')
    for j in range(4): p(f'v_cvt_pk_bf16_f32 {XA[j]}, {XF[2*j]}, {XF[2*j+1]}')
    for c in range(8):
        p(f'v_mfma_f32_16x16x32_bf16 {ACC[4*c:4*c+4]}, {XA}, {FR[4*c:4*c+4]}, 0')
    p('s_cmp_lg_u32 s2, 0')
    p('s_cbranch_scc1 k2_nopub')
    p(f'v_and_b32 {t}, 4, {n}')
    p(f'v_mul_u32_u24 {t}, 320, {t}')
    p(f'v_add_u32 {t}, {t}, {xo}')
    p(f's_mov_b32 {b1}, {hx(XS_OFF)}')
    p(f'buffer_store_dwordx4 {XA}, {t}, {rWs}, {b1} offen')
    p(f'v_mov_b32 {XF[0]}, {sk1}')
    p(f'v_mov_b32 {XF[1]}, {sk2}')
    p(f'v_mov_b32 {t2}, 0')
    p(f's_mov_b32 {b2}, {hx(SEL_OFF)}')
    p(f'buffer_store_dwordx2 {XF[0:2]}, {t2}, {rWs}, {b2} offen')
    p('k2_nopub:')
    for c in range(8):
        b = c % 4; rm = 0x3 if c < 4 else 0xc
        def ror(r):
            return (4*(b - r)) % 16
        r1,r2,r3 = (b+1)%4,(b+2)%4,(b+3)%4
        p(f'v_add_f32_dpp {Ta}, {ACC[4*c+r1]}, {ACC[4*c+b]} row_ror:{ror(r1)} row_mask:{rm:#x} bank_mask:{1<<b:#x}')
        p(f'v_mov_b32_dpp {Tb}, {ACC[4*c+r2]} row_ror:{ror(r2)} row_mask:{rm:#x} bank_mask:{1<<b:#x}')
        p(f'v_mov_b32_dpp {Tc}, {ACC[4*c+r3]} row_ror:{ror(r3)} row_mask:{rm:#x} bank_mask:{1<<b:#x}')
    p(f'v_add_f32 {Ta}, {Ta}, {Tb}')
    p(f'v_add_f32 {Ta}, {Ta}, {Tc}')
    p(f'ds_write_b32 {lwa}, {Ta}')
    p('s_waitcnt lgkmcnt(0)')
    p('s_barrier')
    p(f'ds_read_b128 {RD[0:4]}, {lra}')
    p(f'ds_read_b128 {RD[4:8]}, {lra} offset:16')
    p(f'ds_read_b64 {RD[8:10]}, {lra} offset:32')
    p('s_waitcnt lgkmcnt(0)')
    p(f'v_add_f32 {t}, {RD[0]}, {RD[1]}')
    p(f'v_add_f32 {t2}, {RD[5]}, {RD[6]}')
    p(f'v_add_f32 {t3}, {RD[2]}, {RD[3]}')
    p(f'v_add_f32 {Ta}, {RD[7]}, {RD[8]}')
    p(f'v_add_f32 {t}, {t}, {RD[4]}')
    p(f'v_add_f32 {t2}, {t2}, {RD[9]}')
    p(f'v_add_f32 {t}, {t}, {t3}')
    p(f'v_add_f32 {t2}, {t2}, {Ta}')
    bf16r(p, t, t, smask); bf16r(p, t2, t2, smask)
    silu(p, t, t, t3)
    bf16r(p, t, t, smask)
    p(f'v_mul_f32 {t}, {t}, {t2}')
    p(f'v_cvt_pk_bf16_f32 {t}, {t}, {t}')
    for v in range(4): p(f'v_and_b32 {HF[v]}, {t}, {msk[v]}')
    for c in range(4):
        p(f'v_mfma_f32_16x16x32_bf16 {ACC[4*c:4*c+4]}, {HF}, {FD[4*c:4*c+4]}, 0')
    for c in range(4):
        p(f'v_pk_add_f32 {ACC[4*c:4*c+2]}, {ACC[4*c:4*c+2]}, {ACC[4*c+2:4*c+4]}')
    for c in range(4):
        p(f'v_add_f32 {RD[c]}, {ACC[4*c]}, {ACC[4*c+1]}')
    p(f'v_permlane16_swap_b32 {RD[0]}, {RD[1]}')
    p(f'v_permlane16_swap_b32 {RD[2]}, {RD[3]}')
    p(f'v_add_f32 {RD[0]}, {RD[0]}, {RD[1]}')
    p(f'v_add_f32 {RD[2]}, {RD[2]}, {RD[3]}')
    p(f'buffer_atomic_add_f32 {RD[0]}, {yo}, {rWs}, {SO[7]} offen')
    p(f'buffer_atomic_add_f32 {RD[2]}, {yo}, {rWs}, {SO[7]} offen offset:8')
    T(6); T.dump(pWs, sw)
    p('k2_end:')
    p('s_endpgm')
    return p.finish(), desc('k2_kernel', max(V.hi,hi1), S.hi), NWG

def k3():
    p = Prog(); S = Alloc('s', 3); V = Alloc('v', 1); lane = Reg('v',0,1)
    head(p, 'k3_kernel')
    pWs = S(2,2); pO = S(2,2); sel = S(2,2); pSel = S(2,2)
    rWs = S(4,4); rO = S(4,4)
    sw = S(); st = S(); st2 = S(); sc = S(); scd = S(); stau = S(); smask = S(); ssg = S()
    SW = S(8); SX = S(16); SOo = S(16)
    n = V(); h = V(); col = V(); wo = V(); xo = V(); oo = V(); t = V(); t2 = V(); t3 = V(); stp = V(); hf = V(); tmp=[V(),V(),V()]
    B = V(16,4); A = V(16,4); Y = V(16,4); XG = V(16,4); G = V(16,4)
    y0 = V(); y1 = V(); xs = V()
    p('s_cmp_ge_u32 s2, 256')
    p('s_cbranch_scc1 k3_end')
    T = Stamper(p, 2, 5); T(0); T.init()
    p(f's_load_dwordx2 {pWs}, s[0:1], 96')
    p(f's_load_dwordx2 {pO}, s[0:1], 80')
    p(f'v_lshrrev_b32 {t}, 6, v0')
    p(f'v_and_b32 {lane}, 63, v0')
    p(f'v_readfirstlane_b32 {sw}, {t}')
    p(f'v_and_b32 {n}, 31, {lane}')
    p(f'v_lshrrev_b32 {h}, 5, {lane}')
    p(f's_lshr_b32 {sc}, s2, 2')
    p(f's_and_b32 {st}, s2, 3')
    p(f's_mul_i32 {stau}, {st}, 5')
    p(f's_add_u32 {stau}, {stau}, {sw}')
    p(f's_lshl_b32 {st}, {stau}, 5')
    p(f'v_add_u32 {col}, {st}, {n}')
    p(f'v_sub_u32 {t}, 640, {col}')
    p(f's_sub_u32 {st}, 64, {sc}')
    p(f's_and_b32 {st}, {st}, 63')
    p(f's_mov_b32 {ssg}, {fl(1/2048)}')
    p(f's_mov_b32 {st2}, {fl(-1/2048)}')
    p(f's_cmp_lt_u32 {stau}, 10')
    p(f's_cselect_b32 {scd}, {sc}, {st}')
    p(f's_cselect_b32 {ssg}, {ssg}, {st2}')
    p(f'v_min_u32 {t}, {t}, {col}')
    p(f's_mul_i32 {st}, {scd}, {32*PITCH}')
    p(f's_add_u32 {st}, {st}, {hx(W_OFF)}')
    p(f'v_lshl_add_u32 {wo}, {t}, 2, {st}')
    p(f'v_mul_u32_u24 {t}, {4*PITCH}, {h}')
    p(f'v_add_u32 {wo}, {wo}, {t}')
    p(f'v_mul_u32_u24 {t}, {256*1280}, {h}')
    p(f's_mul_i32 {st}, {sc}, 1280')
    p(f'v_lshl_add_u32 {oo}, {col}, 1, {st}')
    p(f'v_add_u32 {oo}, {oo}, {t}')
    p(f'v_lshlrev_b32 {xo}, 1, {oo}')
    for i in range(8): p(f's_mov_b32 {SW[i]}, {(8*(i//2)+2*(i%2))*PITCH}')
    for R in range(16):
        k = 8*(R//4)+R%4
        p(f's_mov_b32 {SX[R]}, {hx(XG_OFF + k*64*2560)}')
        p(f's_mov_b32 {SOo[R]}, {hx(k*64*1280)}')
    p(f's_mov_b32 {smask}, 0xffff0000')
    p('s_waitcnt lgkmcnt(0)')
    T(1)
    srd(p, rWs, pWs, WS_SIZE); srd(p, rO, pO, 2048*1280)
    p(f's_add_u32 {pSel[0]}, {pWs[0]}, {hx(SEL_OFF)}')
    p(f's_addc_u32 {pSel[1]}, {pWs[1]}, 0')
    p(f's_load_dwordx2 {sel}, {pSel}, 0')
    for R in range(16):
        p(f'buffer_load_dword {B[R]}, {wo}, {rWs}, {SW[R//2]} offen offset:{PITCH*(R%2)}')
    for R in range(16):
        p(f'buffer_load_dword {XG[R]}, {xo}, {rWs}, {SX[R]} offen')
    p(f'v_lshl_add_u32 {t}, {n}, 6, {sc}')
    p(f'v_cvt_f32_u32 {stp}, {t}')
    p(f'v_mul_f32 {stp}, {ssg}, {stp}')
    p(f'v_cvt_f32_u32 {hf}, {h}')
    p(f'v_mul_f32 {hf}, 4.0, {hf}')
    gen_A(p, A, stp, None, None, hf, tmp)
    T(2)
    for kk in range(4):
        p(f's_waitcnt vmcnt({28-4*kk})')
        p(f'v_mfma_f32_32x32x16_f16 {Y}, {A[4*kk:4*kk+4]}, {B[4*kk:4*kk+4]}, {"0" if kk==0 else Y}')
    T(3)
    p('s_waitcnt vmcnt(0) lgkmcnt(0)')
    T(4)
    for R in range(16):
        p(f'v_lshlrev_b32 {G[R]}, 16, {XG[R]}')
        p(f'v_and_b32 {XG[R]}, {smask}, {XG[R]}')
    for tok in range(2):
        p(f's_and_b32 {st}, {sel[tok]}, 63')
        p(f's_cmp_lg_u32 {st}, {sc}')
        p(f's_cbranch_scc1 k3_skip{tok}')
        p(f'v_lshlrev_b32 {t}, 2, {col}')
        p(f'v_lshlrev_b32 {t2}, 1, {col}')
        p(f's_mov_b32 {st}, {hx(Y_OFF + tok*2560)}')
        p(f's_mov_b32 {st2}, {hx(Y_OFF + 5120 + tok*2560)}')
        p(f'buffer_load_dword {y0}, {t}, {rWs}, {st} offen')
        p(f'buffer_load_dword {y1}, {t}, {rWs}, {st2} offen')
        p(f's_mov_b32 {st}, {hx(XS_OFF + tok*1280)}')
        p(f'buffer_load_ushort {xs}, {t2}, {rWs}, {st} offen')
        p(f'v_mov_b32 {t}, {sel[tok]}')
        p(f'v_ashrrev_i32 {t2}, 31, {t}')
        p(f'v_not_b32 {t2}, {t2}')
        p(f'v_or_b32 {t2}, 0x80000000, {t2}')
        p(f'v_xor_b32 {t}, {t}, {t2}')
        p(f'v_and_b32 {t}, {smask}, {t}')
        p(f'v_mul_f32 {t}, {fl(-LOG2E)}, {t}')
        p(f'v_exp_f32 {t}, {t}')
        p(f'v_add_f32 {t}, 1.0, {t}')
        p(f'v_rcp_f32 {t}, {t}')
        bf16r(p, t, t, smask)
        p('s_waitcnt vmcnt(0)')
        p(f'v_add_f32 {y0}, {y0}, {y1}')
        bf16r(p, y0, y0, smask)
        p(f'v_mul_f32 {y0}, {y0}, {t}')
        bf16r(p, y0, y0, smask)
        p(f'v_lshlrev_b32 {xs}, 16, {xs}')
        p(f'v_add_f32 {y0}, {y0}, {xs}')
        bf16r(p, y0, y0, smask)
        silu(p, y0, y0, t)
        bf16r(p, y0, y0, smask)
        p(f's_bfe_u32 {st}, {sel[tok]}, 0x50006')
        p(f'v_lshlrev_b32 {t}, 2, {h}')
        p(f'v_sub_u32 {t}, {st}, {t}')
        for R in range(16):
            p(f'v_cmp_eq_u32 vcc, {8*(R//4)+R%4}, {t}')
            p(f'v_cndmask_b32 {G[R]}, {G[R]}, {y0}, vcc')
        p(f'k3_skip{tok}:')
    for R in range(16):
        p(f'v_fma_f32 {G[R]}, {Y[R]}, {G[R]}, {XG[R]}')
    for R in range(0,16,2):
        p(f'v_cvt_pk_bf16_f32 {G[R]}, {G[R]}, {G[R+1]}')
    for R in range(0,16,2):
        p(f'buffer_store_short {G[R]}, {oo}, {rO}, {SOo[R]} offen')
        p(f'buffer_store_short_d16_hi {G[R]}, {oo}, {rO}, {SOo[R+1]} offen')
    T(6); T.dump(pWs, sw)
    p('k3_end:')
    p('s_endpgm')
    return p.finish(), desc('k3_kernel', V.hi, S.hi)

def main(out):
    c1,d1 = k1(); c2,d2,n2 = k2(); c3,d3 = k3()
    hdr = f"""; FNet-mix + MoD block: three launches (row FFT / column FFT stage 1 + FFN / column FFT stage 2 + epilogue)
; @launch kernel=k1_kernel grid=(256,1,1) block=(512,1,1) lds=10240
; @launch kernel=k2_kernel grid=({n2},1,1) block=(640,1,1) lds=3072
; @launch kernel=k3_kernel grid=(256,1,1) block=(320,1,1) lds=0
.amdgcn_target "amdgcn-amd-amdhsa--gfx950"
.text
"""
    if os.environ.get('DIAG'):
        import diag
        ent=[(0,0,2048,0,'min'),(0,0,2048,1,'max'),(0,0,2048,2,'max'),(0,0,2048,3,'max'),(0,0,2048,7,'max'),
             (1,0,1824,0,'min'),(1,0,1824,1,'max'),(1,0,540,2,'max'),(1,0,540,5,'max'),(1,0,1824,7,'max'),
             (2,0,1280,0,'min'),(2,0,1280,1,'max'),(2,0,1280,2,'max'),(2,0,1280,4,'max'),(2,0,1280,7,'max')]
        c4,d4=diag.k4(ent,0,STAMP_OFF)
        hdr=hdr.replace('.amdgcn_target','; @launch kernel=k9_kernel grid=(1,1,1) block=(256,1,1) lds=0\n.amdgcn_target')
        c3+=c4; d3+=d4
    open(out,'w').write(hdr + c1 + c2 + c3 + '.section .rodata,"a"\n' + d1 + d2 + d3)

if __name__ == '__main__':
    main(sys.argv[1])
```

```python
from asmlib import *
def hx(x): return '0x%08x' % (x & 0xffffffff)
def k4(entries, nk, STAMP_OFF):
    p = Prog()
    p('.globl k9_kernel\n.p2align 8\n.type k9_kernel,@function\nk9_kernel:')
    p('s_cmp_ge_u32 s2, 1')
    p('s_cbranch_scc1 k9_end')
    p('s_memrealtime s[20:21]')
    p('s_load_dwordx2 s[4:5], s[0:1], 96')
    p('s_load_dwordx2 s[6:7], s[0:1], 88')
    p('s_waitcnt lgkmcnt(0)')
    p(f's_sub_u32 s6, s6, {512*nk}')
    p('s_subb_u32 s7, s7, 0')
    p('s_mov_b32 s8, s4\ns_mov_b32 s9, s5\ns_mov_b32 s11, 0x00020000')
    p('v_lshlrev_b32 v1, 5, v0')
    p('v_mov_b32 v2, 0')
    for i,(kid,lo,hi,st,mode) in enumerate(entries):
        base = STAMP_OFF + kid*4096*32
        p(f's_mov_b32 s10, {hx(base+hi*32)}')
        n = (hi-lo+255)//256
        for j in range(n):
            p(f's_mov_b32 s12, {hx(base+(lo+256*j)*32+4*st)}')
            p(f'buffer_load_dword v{8+j}, v1, s[8:11], s12 offen')
        p('s_waitcnt vmcnt(0)')
        p('v_mov_b32 v3, 0')
        for j in range(n):
            if mode=='min':
                p(f'v_cmp_ne_u32 vcc, 0, v{8+j}')
                p(f'v_not_b32 v{8+j}, v{8+j}')
                p(f'v_cndmask_b32 v{8+j}, 0, v{8+j}, vcc')
            p(f'v_max_u32 v3, v3, v{8+j}')
        p(f'global_atomic_umax v2, v3, s[6:7] offset:{4*i}')
    p('v_mov_b32 v3, s20')
    p(f'global_atomic_umax v2, v3, s[6:7] offset:{4*len(entries)}')
    p('k9_end:')
    p('s_endpgm')
    d = """.p2align 6
.amdhsa_kernel k9_kernel
  .amdhsa_next_free_vgpr 32
  .amdhsa_next_free_sgpr 32
  .amdhsa_accum_offset 32
  .amdhsa_group_segment_fixed_size 0
  .amdhsa_kernarg_size 104
  .amdhsa_user_sgpr_count 2
  .amdhsa_user_sgpr_kernarg_segment_ptr 1
  .amdhsa_system_sgpr_workgroup_id_x 1
.end_amdhsa_kernel
"""
    return p.finish(), d

def kspin(STAMP_OFF, mode, a=None, b=None, target=4000, mult=4):
    p = Prog()
    p('.globl k9_kernel\n.p2align 8\n.type k9_kernel,@function\nk9_kernel:')
    p('s_cmp_ge_u32 s2, 1')
    p('s_cbranch_scc1 k9_end')
    p('s_load_dwordx2 s[4:5], s[0:1], 96')
    p('s_waitcnt lgkmcnt(0)')
    p('s_mov_b32 s8, s4\ns_mov_b32 s9, s5\ns_mov_b32 s11, 0x00020000')
    p('v_lshlrev_b32 v1, 5, v0')
    def red(ent, sdst):
        kid,lo,hi,st,mm = ent
        base = STAMP_OFF + kid*4096*32
        p(f's_mov_b32 s10, {hx(base+hi*32)}')
        n = (hi-lo+63)//64
        for j in range(n):
            p(f's_mov_b32 s12, {hx(base+(lo+64*j)*32+4*st)}')
            p(f'buffer_load_dword v{8+j}, v1, s[8:11], s12 offen')
        p('s_waitcnt vmcnt(0)')
        p('v_mov_b32 v3, 0')
        for j in range(n):
            if mm=='min':
                p(f'v_cmp_ne_u32 vcc, 0, v{8+j}')
                p(f'v_not_b32 v{8+j}, v{8+j}')
                p(f'v_cndmask_b32 v{8+j}, 0, v{8+j}, vcc')
            p(f'v_max_u32 v3, v3, v{8+j}')
        for m in ('quad_perm:[1,0,3,2] row_mask:0xf','quad_perm:[2,3,0,1] row_mask:0xf','row_half_mirror row_mask:0xf',
              'row_mirror row_mask:0xf','row_bcast:15 row_mask:0xa','row_bcast:31 row_mask:0xc'):
            p(f'v_max_u32_dpp v3, v3, v3 {m} bank_mask:0xf')
        p(f'v_readlane_b32 {sdst}, v3, 63')
        p('s_nop 3')
        if mm=='min': p(f's_not_b32 {sdst}, {sdst}')
    red(a,'s14')
    if mode=='abs':
        p(f's_mov_b32 s16, {target}')
    else:
        red(b,'s15')
        p('s_sub_u32 s16, s15, s14')
        p('s_min_u32 s16, s16, 5000')
        p(f's_mul_i32 s16, s16, {mult}')
        p(f's_add_u32 s16, s16, {target}')
        red((0,0,2048,0,'min'),'s14')
    p('s_mov_b32 s17, 0')
    p('k9_loop:')
    p('s_memrealtime s[20:21]')
    p('s_waitcnt lgkmcnt(0)')
    p('s_sub_u32 s18, s20, s14')
    p('s_add_u32 s17, s17, 1')
    p('s_cmp_ge_u32 s17, 200000')
    p('s_cbranch_scc1 k9_end')
    p('s_cmp_lt_u32 s18, s16')
    p('s_cbranch_scc1 k9_loop ; backok')
    p('k9_end:')
    p('s_endpgm')
    d = """.p2align 6
.amdhsa_kernel k9_kernel
  .amdhsa_next_free_vgpr 48
  .amdhsa_next_free_sgpr 32
  .amdhsa_accum_offset 48
  .amdhsa_group_segment_fixed_size 0
  .amdhsa_kernarg_size 104
  .amdhsa_user_sgpr_count 2
  .amdhsa_user_sgpr_kernarg_segment_ptr 1
  .amdhsa_system_sgpr_workgroup_id_x 1
.end_amdhsa_kernel
"""
    return p.finish(), d
```

```python
import sys, struct, math
from asmlib import *

def f2u(x): return struct.unpack('<I', struct.pack('<f', x))[0]
def hx(x): return '0x%08x' % (x & 0xffffffff)
def fl(x): return hx(f2u(x))

PITCH = 1408
Z_OFF   = 0
W_OFF   = 0x300000
XG_OFF  = 0x600000
KEY_OFF = 0xB00000
ST_OFF  = 0xB02000
Y_OFF   = 0xB08000
SEL_OFF = 0xB0C000
XS_OFF  = 0xB0C100
WS_SIZE = 0xC00000
NFFN = 54
LOG2E = 1.4426950408889634

def srd(p, D, base, nbytes):
    p(f's_mov_b32 {D[0]}, {base[0]}')
    p(f's_mov_b32 {D[1]}, {base[1]}')
    p(f's_mov_b32 {D[2]}, {hx(nbytes)}')
    p(f's_mov_b32 {D[3]}, 0x00020000')

def wave_sum(p, t, sdst):
    for m in ('quad_perm:[1,0,3,2] row_mask:0xf','quad_perm:[2,3,0,1] row_mask:0xf','row_half_mirror row_mask:0xf',
              'row_mirror row_mask:0xf','row_bcast:15 row_mask:0xa','row_bcast:31 row_mask:0xc'):
        p(f'v_add_f32_dpp {t}, {t}, {t} {m} bank_mask:0xf')
    p(f'v_readlane_b32 {sdst}, {t}, 63')

def bf16r(p, d, s, smask):
    p(f'v_cvt_pk_bf16_f32 {d}, {s}, {s}')
    p(f'v_and_b32 {d}, {smask}, {d}')

def silu(p, d, z, t):
    p(f'v_mul_f32 {t}, {fl(-LOG2E)}, {z}')
    p(f'v_exp_f32 {t}, {t}')
    p(f'v_add_f32 {t}, 1.0, {t}')
    p(f'v_rcp_f32 {t}, {t}')
    p(f'v_mul_f32 {d}, {z}, {t}')

def desc(name, nv, ns):
    if STAMP: ns = 100
    nv4 = (nv+3)//4*4
    return f""".p2align 6
.amdhsa_kernel {name}
  .amdhsa_next_free_vgpr {nv4}
  .amdhsa_next_free_sgpr {ns}
  .amdhsa_accum_offset {nv4}
  .amdhsa_group_segment_fixed_size 0
  .amdhsa_kernarg_size 104
  .amdhsa_user_sgpr_count 2
  .amdhsa_user_sgpr_kernarg_segment_ptr 1
  .amdhsa_system_sgpr_workgroup_id_x 1
  .amdhsa_float_denorm_mode_32 3
  .amdhsa_float_denorm_mode_16_64 3
.end_amdhsa_kernel
"""

import os
STAMP = bool(os.environ.get('STAMP'))
STAMP_OFF = 0x1000000
class Stamper:
    def __init__(self, p, kid, wpw):
        self.p=p; self.kid=kid; self.wpw=wpw
    def __call__(self, k):
        if STAMP: self.p(f's_memrealtime s[{80+2*k}:{81+2*k}]')
    def init(self):
        if STAMP:
            for k in range(1,8): self.p(f's_mov_b64 s[{80+2*k}:{81+2*k}], 0')
    def dump(self, pWs, sw):
        if not STAMP: return
        p=self.p
        p('s_waitcnt vmcnt(0) lgkmcnt(0)')
        self(7)
        p('s_waitcnt lgkmcnt(0)')
        p('s_mov_b64 exec, 1')
        p(f's_mul_i32 s96, s2, {self.wpw}')
        p(f's_add_u32 s96, s96, {sw}')
        p(f's_lshl_b32 s96, s96, 5')
        p(f's_add_u32 s96, s96, {hx(STAMP_OFF + self.kid*4096*32)}')
        p(f's_add_u32 s98, {pWs[0]}, s96')
        p(f's_addc_u32 s99, {pWs[1]}, 0')
        for k in range(8): p(f'v_mov_b32 v{4+k}, s{80+2*k}')
        p('v_mov_b32 v2, 0')
        p('global_store_dwordx4 v2, v[4:7], s[98:99]')
        p('global_store_dwordx4 v2, v[8:11], s[98:99] offset:16')

def head(p, name):
    p(f'.globl {name}\n.p2align 8\n.type {name},@function\n{name}:')

def k1():
    p = Prog(); V = Alloc('v', 1); S = Alloc('s', 3)
    head(p, 'k1_kernel')
    pX = S(2,2); pWr = S(2,2); pWs = S(2,2)
    rX = S(4,4); rWr = S(4,4); rWs = S(4,4)
    sw = S(); ssig = S(); st0 = S(); srow = S(); sxo = S(); st = S(); smask = S(); ssgn = S(); ssum = S()
    sp0 = S(); sp1 = S(); szo = S()
    lane = V(); l32 = V(); h = V(); o8 = V(); o4 = V(); t = V(); t2 = V(); t3 = V()
    X = V(6,2); WR = V(6,2); F = V(10,2); Dd = V(10,2)
    BF = V(16,4)
    TC = V(12,2); TS = V(12,2); A2 = V(12,4)
    Aa = V(8,4); Ab = V(8,4)
    Tr = V(16,4); Ti = V(16,4); O = V(16,4); P = V(12,4)
    lw = V(); lr = V(); zoff = V(); mean = V(); mb = V(2,2); rden = mb[1]; mb0 = mb[0]
    XG = V(12,4)
    p('s_cmp_ge_u32 s2, 256')
    p('s_cbranch_scc1 k1_end')
    T = Stamper(p, 0, 8); T(0); T.init()
    p(f's_load_dwordx2 {pX}, s[0:1], 0')
    p(f's_load_dwordx2 {pWr}, s[0:1], 48')
    p(f's_load_dwordx2 {pWs}, s[0:1], 96')
    p(f'v_lshrrev_b32 {t}, 6, v0')
    p(f'v_and_b32 {lane}, 63, v0')
    p(f'v_readfirstlane_b32 {sw}, {t}')
    p(f'v_lshlrev_b32 {o8}, 3, {lane}')
    p(f'v_lshlrev_b32 {o4}, 2, {lane}')
    p(f'v_and_b32 {l32}, 31, {lane}')
    p(f'v_lshrrev_b32 {h}, 5, {lane}')
    p(f's_lshr_b32 {ssig}, {sw}, 1')
    p(f's_lshl_b32 {st}, s2, 2')
    p(f's_add_u32 {ssig}, {ssig}, {st}')
    p(f's_and_b32 {st0}, {sw}, 1')
    p(f's_lshl_b32 {st}, {st0}, 10')
    p(f's_add_u32 {srow}, {ssig}, {st}')
    p(f's_mul_i32 {sxo}, {srow}, 1280')
    p(f's_mov_b32 {smask}, 0xffff0000')
    p('s_waitcnt lgkmcnt(0)')
    T(1)
    srd(p, rX, pX, 2048*1280); srd(p, rWr, pWr, 1280); srd(p, rWs, pWs, WS_SIZE)
    p(f'buffer_load_dwordx2 {X[0:2]}, {o8}, {rX}, {sxo} offen')
    p(f'buffer_load_dwordx2 {X[2:4]}, {o8}, {rX}, {sxo} offen offset:512')
    p(f'buffer_load_dword {X[4]}, {o4}, {rX}, {sxo} offen offset:1024')
    p(f'buffer_load_dwordx2 {WR[0:2]}, {o8}, {rWr}, 0 offen')
    p(f'buffer_load_dwordx2 {WR[2:4]}, {o8}, {rWr}, 0 offen offset:512')
    p(f'buffer_load_dword {WR[4]}, {o4}, {rWr}, 0 offen offset:1024')
    p('s_cmp_ge_u32 s2, 5')
    p('s_cbranch_scc1 k1_nozero')
    p(f's_lshl_b32 {st}, s2, 11')
    p(f's_add_u32 {st}, {st}, {hx(Y_OFF)}')
    p(f'v_lshlrev_b32 {t}, 2, v0')
    p(f'v_mov_b32 {t2}, 0')
    p(f'buffer_store_dword {t2}, {t}, {rWs}, {st} offen')
    p('k1_nozero:')
    e1f = O[0]; hf = O[1]; ang = O[2]; c0 = O[3]; c1 = O[4]; s0 = O[5]; s1 = O[6]; stp = O[7]; base = O[8]; sg = O[9]
    p(f'v_cvt_f32_u32 {e1f}, {l32}')
    p(f'v_cvt_f32_u32 {hf}, {h}')
    p(f'v_mul_f32 {stp}, {fl(1/32)}, {e1f}')
    p(f'v_mul_f32 {base}, {hf}, {stp}')
    p(f'v_mul_f32 {base}, {fl(8.0)}, {base}')
    p(f'v_and_b32 {sg}, 1, {l32}')
    p(f'v_mul_u32_u24 {sg}, 0x8000, {sg}')
    p(f'v_lshl_or_b32 {sg}, {sg}, 16, {sg}')
    for v in range(4):
        p(f'v_cos_f32 {c0}, {base}'); p(f'v_sin_f32 {s0}, {base}')
        p(f'v_add_f32 {base}, {base}, {stp}')
        p(f'v_cos_f32 {c1}, {base}'); p(f'v_sin_f32 {s1}, {base}')
        p(f'v_add_f32 {base}, {base}, {stp}')
        p(f'v_cvt_pk_f16_f32 {BF[v]}, {c0}, {c1}')
        p(f'v_cvt_pk_f16_f32 {BF[8+v]}, -{s0}, -{s1}')
        p(f'v_xor_b32 {BF[4+v]}, {sg}, {BF[v]}')
        p(f'v_xor_b32 {BF[12+v]}, {sg}, {BF[8+v]}')
    p(f'v_mul_f32 {stp}, {fl(1/640)}, {e1f}')
    p(f'v_mul_f32 {base}, 4.0, {hf}')
    for R in range(12):
        k = 8*(R//4)+R%4
        p(f'v_add_f32 {ang}, {fl(float(k))}, {base}')
        p(f'v_mul_f32 {ang}, {ang}, {stp}')
        p(f'v_cos_f32 {TC[R]}, {ang}'); p(f'v_sin_f32 {TS[R]}, {ang}')
    p(f'v_lshrrev_b32 {t}, 1, {l32}')
    p(f'v_cvt_f32_u32 {stp}, {t}')
    p(f'v_mul_f32 {stp}, {fl(1/20)}, {stp}')
    p(f'v_and_b32 {t}, 1, {l32}')
    p(f'v_cvt_f32_u32 {c1}, {t}')
    p(f'v_mul_f32 {c1}, {fl(0.25)}, {c1}')
    p(f'v_cmp_eq_u32 vcc, 0, {h}')
    for R in range(12):
        k = 8*(R//4)+R%4
        p(f'v_add_f32 {ang}, {fl(float(k))}, {base}')
        p(f'v_fma_f32 {ang}, {ang}, {stp}, {c1}')
        p(f'v_cos_f32 {c0}, {ang}'); p(f'v_sin_f32 {s0}, {ang}')
        p(f'v_cvt_pk_f16_f32 {A2[R]}, {c0}, {s0}')
        if R >= 8: p(f'v_cndmask_b32 {A2[R]}, 0, {A2[R]}, vcc')
    p(f's_mul_i32 {st}, {sw}, 1280')
    p(f'v_add_u32 {lw}, {st}, {o8}')
    p(f'v_bfe_u32 {t}, {lane}, 2, 2')
    p(f'v_lshl_add_u32 {t}, {h}, 3, {t}')
    p(f'v_mul_u32_u24 {t}, 40, {t}')
    p(f'v_and_b32 {t2}, 3, {lane}')
    p(f'v_lshlrev_b32 {t2}, 3, {t2}')
    p(f'v_and_b32 {t3}, 16, {lane}')
    p(f'v_cmp_eq_u32 vcc, 0, {t3}')
    p(f'v_cndmask_b32 {t2}, 32, {t2}, vcc')
    p(f's_and_b32 {st}, {sw}, 6')
    p(f's_mul_i32 {st}, {st}, 1280')
    p(f'v_add3_u32 {lr}, {t}, {t2}, {st}')
    p(f's_cmp_eq_u32 {st0}, 0')
    p(f's_cselect_b32 {ssgn}, 0x3c003c00, 0xbc00bc00') if False else None
    p(f's_mov_b32 {ssgn}, 0x3c003c00')
    p(f's_mov_b32 {st}, 0xbc00bc00')
    p(f's_cselect_b32 {ssgn}, {ssgn}, {st}')
    p(f'v_lshlrev_b32 {zoff}, 8, {h}')
    p(f'v_lshl_add_u32 {zoff}, {l32}, 2, {zoff}')
    p(f's_mul_i32 {szo}, {srow}, {PITCH}')
    p(f's_mov_b32 {sp0}, 0x05040100')
    p(f's_mov_b32 {sp1}, 0x07060302')
    T(2)
    p('s_waitcnt vmcnt(0)')
    T(3)
    for j in range(5):
        p(f'v_lshlrev_b32 {F[2*j]}, 16, {X[j]}')
        p(f'v_and_b32 {F[2*j+1]}, {smask}, {X[j]}')
    p(f'v_pk_add_f32 {Dd[0:2]}, {F[0:2]}, {F[2:4]}')
    p(f'v_pk_add_f32 {Dd[2:4]}, {F[4:6]}, {F[6:8]}')
    p(f'v_pk_add_f32 {Dd[0:2]}, {Dd[0:2]}, {F[8:10]}')
    p(f'v_pk_add_f32 {Dd[0:2]}, {Dd[0:2]}, {Dd[2:4]}')
    p(f'v_add_f32 {t}, {Dd[0]}, {Dd[1]}')
    wave_sum(p, t, ssum)
    p(f'v_mov_b32 {mean}, {ssum}')
    p(f'v_mul_f32 {mean}, {fl(1/640)}, {mean}')
    bf16r(p, mb0, mean, smask)
    for j in range(10): p(f'v_sub_f32 {Dd[j]}, {F[j]}, {mb0}')
    p(f'v_mul_f32 {t}, {Dd[0]}, {Dd[0]}')
    p(f'v_mul_f32 {t2}, {Dd[1]}, {Dd[1]}')
    for j in range(2,10,2):
        p(f'v_fmac_f32 {t}, {Dd[j]}, {Dd[j]}')
        p(f'v_fmac_f32 {t2}, {Dd[j+1]}, {Dd[j+1]}')
    p(f'v_add_f32 {t}, {t}, {t2}')
    wave_sum(p, t, ssum)
    p(f'v_sub_f32 {mean}, {mean}, {mb0}')
    p(f'v_mul_f32 {mean}, {mean}, {mean}')
    p(f'v_mov_b32 {t}, {ssum}')
    p(f'v_mul_f32 {t}, {fl(1/640)}, {t}')
    p(f'v_sub_f32 {t}, {t}, {mean}')
    p(f'v_max_f32 {t}, 0, {t}')
    bf16r(p, t, t, smask)
    p(f'v_add_f32 {t}, {fl(1e-5)}, {t}')
    bf16r(p, t, t, smask)
    p(f'v_sqrt_f32 {t}, {t}')
    bf16r(p, t, t, smask)
    p(f'v_rcp_f32 {rden}, {t}')
    XN = P
    for j in range(5):
        p(f'v_cvt_pk_bf16_f32 {XN[j]}, {Dd[2*j]}, {Dd[2*j+1]}')
    for j in range(5):
        p(f'v_lshlrev_b32 {Dd[2*j]}, 16, {XN[j]}')
        p(f'v_and_b32 {Dd[2*j+1]}, {smask}, {XN[j]}')
    for j in range(10): p(f'v_mul_f32 {Dd[j]}, {Dd[j]}, {rden}')
    for j in range(5):
        p(f'v_cvt_pk_bf16_f32 {XN[j]}, {Dd[2*j]}, {Dd[2*j+1]}')
    for j in range(5):
        p(f'v_lshlrev_b32 {F[2*j]}, 16, {XN[j]}')
        p(f'v_and_b32 {F[2*j+1]}, {smask}, {XN[j]}')
    H = P[6:12]
    for j in range(5):
        p(f'v_cvt_pk_f16_f32 {H[j]}, {F[2*j]}, {F[2*j+1]}')
    p(f'ds_write_b64 {lw}, {H[0:2]}')
    p(f'ds_write_b64 {lw}, {H[2:4]} offset:512')
    p(f'v_sub_u32 {t}, {lw}, {o4}')
    p(f'ds_write_b32 {t}, {H[4]} offset:1024')
    for j in range(5):
        p(f'v_lshlrev_b32 {Dd[2*j]}, 16, {WR[j]}')
        p(f'v_and_b32 {Dd[2*j+1]}, {smask}, {WR[j]}')
    p(f'v_mul_f32 {t}, {Dd[0]}, {F[0]}')
    p(f'v_mul_f32 {t2}, {Dd[1]}, {F[1]}')
    for j in range(2,10,2):
        p(f'v_fmac_f32 {t}, {Dd[j]}, {F[j]}')
        p(f'v_fmac_f32 {t2}, {Dd[j+1]}, {F[j+1]}')
    p(f'v_add_f32 {t}, {t}, {t2}')
    T(4)
    p('s_waitcnt lgkmcnt(0)')
    p('s_barrier')
    T(5)
    for kk in range(2):
        for u in range(2):
            p(f'ds_read_b64_tr_b16 {Aa[4*kk+2*u:4*kk+2*u+2]}, {lr} offset:{640*kk+160*u}')
            p(f'ds_read_b64_tr_b16 {Ab[4*kk+2*u:4*kk+2*u+2]}, {lr} offset:{1280+640*kk+160*u}')
    wave_sum(p, t, ssum)
    p(f'v_mov_b32 {t}, {ssum}')
    bf16r(p, t, t, smask)
    p(f'v_ashrrev_i32 {t2}, 31, {t}')
    p(f'v_or_b32 {t2}, 0x80000000, {t2}')
    p(f'v_xor_b32 {t}, {t}, {t2}')
    p(f'v_and_b32 {t}, {smask}, {t}')
    p(f'v_or_b32 {t}, {srow}, {t}')
    p(f'v_mov_b32 {t2}, 0')
    p(f's_lshl_b32 {st}, {srow}, 2')
    p(f's_add_u32 {st}, {st}, {hx(KEY_OFF)}')
    p(f's_lshl_b32 {ssum}, {srow}, 3')
    p(f's_add_u32 {ssum}, {ssum}, {hx(ST_OFF)}')
    p('s_mov_b64 exec, 1')
    p(f'buffer_store_dword {t}, {t2}, {rWs}, {st} offen')
    p(f'buffer_store_dwordx2 {mb}, {t2}, {rWs}, {ssum} offen')
    p('s_mov_b64 exec, -1')
    p('s_waitcnt lgkmcnt(0)')
    for j in range(8):
        p(f'v_pk_fma_f16 {Aa[j]}, {Ab[j]}, {ssgn}, {Aa[j]}')
    p(f'v_mfma_f32_32x32x16_f16 {Tr}, {Aa[0:4]}, {BF[0:4]}, 0')
    p(f'v_mfma_f32_32x32x16_f16 {Ti}, {Aa[0:4]}, {BF[8:12]}, 0')
    p(f'v_mfma_f32_32x32x16_f16 {Tr}, {Aa[4:8]}, {BF[4:8]}, {Tr}')
    p(f'v_mfma_f32_32x32x16_f16 {Ti}, {Aa[4:8]}, {BF[12:16]}, {Ti}')
    for j in range(10): p(f'v_mul_f32 {Dd[j]}, {fl(-LOG2E)}, {F[j]}')
    for j in range(10): p(f'v_exp_f32 {Dd[j]}, {Dd[j]}')
    for j in range(10): p(f'v_add_f32 {Dd[j]}, 1.0, {Dd[j]}')
    for j in range(10): p(f'v_rcp_f32 {Dd[j]}, {Dd[j]}')
    for j in range(10): p(f'v_mul_f32 {Dd[j]}, {F[j]}, {Dd[j]}')
    for j in range(5):
        p(f'v_cvt_pk_bf16_f32 {WR[j]}, {Dd[2*j]}, {Dd[2*j+1]}')
    for j in range(5):
        p(f'v_perm_b32 {XG[2*j]}, {X[j]}, {WR[j]}, {sp0}')
        p(f'v_perm_b32 {XG[2*j+1]}, {X[j]}, {WR[j]}, {sp1}')
    p(f's_lshl_b32 {st}, {sxo}, 1')
    p(f's_add_u32 {st}, {st}, {hx(XG_OFF)}')
    p(f'v_lshlrev_b32 {t}, 4, {lane}')
    p(f'buffer_store_dwordx4 {XG[0:4]}, {t}, {rWs}, {st} offen')
    p(f'buffer_store_dwordx4 {XG[4:8]}, {t}, {rWs}, {st} offen offset:1024')
    p(f'buffer_store_dwordx2 {XG[8:10]}, {o8}, {rWs}, {st} offen offset:2048')
    for R in range(0,12,2):
        a=O[R:R+2];
        p(f'v_pk_mul_f32 {O[0:2]}, {Tr[R:R+2]}, {TC[R:R+2]}')
        p(f'v_pk_mul_f32 {O[2:4]}, {Ti[R:R+2]}, {TC[R:R+2]}')
        p(f'v_pk_fma_f32 {O[0:2]}, {Ti[R:R+2]}, {TS[R:R+2]}, {O[0:2]}')
        p(f'v_pk_fma_f32 {O[2:4]}, {Tr[R:R+2]}, {TS[R:R+2]}, {O[2:4]} neg_lo:[1,0,0] neg_hi:[1,0,0]')
        p(f'v_cvt_pk_f16_f32 {P[R]}, {O[0]}, {O[2]}')
        p(f'v_cvt_pk_f16_f32 {P[R+1]}, {O[1]}, {O[3]}')
    p(f'v_mfma_f32_32x32x16_f16 {O}, {A2[0:4]}, {P[0:4]}, 0')
    p(f'v_mfma_f32_32x32x16_f16 {O}, {A2[4:8]}, {P[4:8]}, {O}')
    p(f'v_mfma_f32_32x32x16_f16 {O}, {A2[8:12]}, {P[8:12]}, {O}')
    for m in range(6):
        p(f'v_cvt_pk_f16_f32 {Tr[m]}, {O[2*m]}, {O[2*m+1]}')
    for m in range(6):
        if m == 5: p('s_mov_b32 exec_hi, 0')
        p(f'buffer_store_dword {Tr[m]}, {zoff}, {rWs}, {szo} offen offset:{512*(m//2)+128*(m%2)}')
    T(6); T.dump(pWs, sw)
    p('k1_end:')
    p('s_endpgm')
    return p.finish(), desc('k1_kernel', V.hi, S.hi)

def gen_A(p, A, stp, base, ph, hf, tmp):
    ang, c0, s0 = tmp
    for R in range(16):
        k = 8*(R//4)+R%4
        p(f'v_add_f32 {ang}, {fl(float(k))}, {hf}')
        if ph is None: p(f'v_mul_f32 {ang}, {ang}, {stp}')
        else: p(f'v_fma_f32 {ang}, {ang}, {stp}, {ph}')
        p(f'v_cos_f32 {c0}, {ang}'); p(f'v_sin_f32 {s0}, {ang}')
        p(f'v_cvt_pk_f16_f32 {A[R]}, {c0}, {s0}')

def top2_merge_dpp(p, m1, m2, a, b, mod):
    p(f'v_mov_b32_dpp {a}, {m1} {mod}')
    p(f'v_mov_b32_dpp {b}, {m2} {mod}')
    p(f'v_max_u32 {m2}, {m2}, {b}')
    p(f'v_med3_u32 {m2}, {m1}, {a}, {m2}')
    p(f'v_max_u32 {m1}, {m1}, {a}')

def k2():
    p = Prog(); S = Alloc('s', 3)
    head(p, 'k2_kernel')
    NWG = NFFN + 128 + 1
    pWs = S(2,2); pX = S(2,2); pG = S(2,2); pU = S(2,2); pD = S(2,2)
    rWs = S(4,4); rX = S(4,4); rW = S(4,4); rD = S(4,4)
    sw = S(); st = S(); st2 = S(); sj = S(); st0 = S(); ss2 = S(); sct = S(); sth = S(); smask = S()
    SO = S(16)
    sp0 = S(); sp1 = S(); sk1 = S(); sk2 = S()
    p(f's_cmp_ge_u32 s2, {NWG}')
    p('s_cbranch_scc1 k2_end')
    T = Stamper(p, 1, 10); T(0); T.init()
    p(f's_load_dwordx2 {pWs}, s[0:1], 96')
    p(f's_load_dwordx2 {pX}, s[0:1], 0')
    p(f's_load_dwordx2 {pG}, s[0:1], 56')
    p(f's_load_dwordx2 {pU}, s[0:1], 64')
    p(f's_load_dwordx2 {pD}, s[0:1], 72')
    p(f'v_lshrrev_b32 v1, 6, v0')
    p(f'v_and_b32 v0, 63, v0')
    p(f'v_readfirstlane_b32 {sw}, v1')
    p(f's_cmp_lt_u32 s2, {NFFN}')
    p('s_cbranch_scc1 k2_ffn')
    V = Alloc('v', 1); lane = Reg('v',0,1)
    n = V(); h = V(); lo = V(); so = V(); t = V(); t2 = V(); stp = V(); ph = V(); hf = V(); tmp = [V(),V(),V()]
    B = V(16,4); A = V(16,4); Dacc = V(16,4); Pk = V(8)
    p(f'v_and_b32 {n}, 31, {lane}')
    p(f'v_lshrrev_b32 {h}, 5, {lane}')
    p(f's_sub_u32 {sj}, s2, {NFFN}')
    p(f's_and_b32 {sth}, {sw}, 1')
    for i in range(16):
        p(f's_mov_b32 {SO[i]}, {hx((8*(i//4)+i%4)*32*PITCH)}')
    p(f's_cmp_eq_u32 {sj}, 128')
    p('s_cbranch_scc1 k2_special')
    p(f's_bfe_u32 {st0}, {sj}, 0x10001')
    p(f's_lshr_b32 {ss2}, {sj}, 2')
    p(f's_and_b32 {st}, {sj}, 1')
    p(f's_mul_i32 {st}, {st}, 5')
    p(f's_lshr_b32 {sct}, {sw}, 1')
    p(f's_add_u32 {sct}, {sct}, {st}')
    p(f's_mul_i32 {st}, {ss2}, {PITCH}')
    p(f's_lshl_b32 {st2}, {sct}, 7')
    p(f's_add_u32 {st}, {st}, {st2}')
    p(f'v_lshl_add_u32 {t}, {n}, 2, {st}')
    p('s_branch k2_common')
    p('k2_special:')
    p(f's_cmp_ge_u32 {sw}, 4')
    p('s_cbranch_scc1 k2_end')
    p(f's_lshr_b32 {st0}, {sw}, 1')
    p(f'v_mul_u32_u24 {t}, {PITCH}, {n}')
    p(f'v_add_u32 {t}, 1280, {t}')
    p('k2_common:')
    p(f'v_mul_u32_u24 {t2}, {4*32*PITCH}, {h}')
    p(f'v_add_u32 {t}, {t}, {t2}')
    p(f's_mul_i32 {st}, {st0}, {1024*PITCH}')
    p(f'v_add_u32 {lo}, {st}, {t}')
    p(f's_lshl_b32 {st}, {sth}, 5')
    p(f's_add_u32 {st}, {st}, {st0}')
    p(f's_mul_i32 {st}, {st}, {32*PITCH}')
    p(f's_add_u32 {st}, {st}, {hx(W_OFF)}')
    p(f'v_add_u32 {so}, {st}, {t}')
    p('s_waitcnt lgkmcnt(0)')
    T(1)
    srd(p, rWs, pWs, WS_SIZE)
    for i in range(16):
        p(f'buffer_load_dword {B[i]}, {lo}, {rWs}, {SO[i]} offen')
    p(f's_lshl_b32 {st}, {sth}, 5')
    p(f's_add_u32 {st}, {st}, {st0}')
    p(f'v_and_b32 {t}, 30, {n}')
    p(f'v_add_u32 {t}, {st}, {t}')
    p(f'v_cvt_f32_u32 {stp}, {t}')
    p(f'v_mul_f32 {stp}, {fl(1/64)}, {stp}')
    p(f'v_and_b32 {t}, 1, {n}')
    p(f'v_cvt_f32_u32 {ph}, {t}')
    p(f'v_mul_f32 {ph}, {fl(0.25)}, {ph}')
    p(f'v_cvt_f32_u32 {hf}, {h}')
    p(f'v_mul_f32 {hf}, 4.0, {hf}')
    gen_A(p, A, stp, None, ph, hf, tmp)
    T(2)
    for kk in range(4):
        p(f's_waitcnt vmcnt({12-4*kk})')
        if kk==3: T(3)
        p(f'v_mfma_f32_32x32x16_f16 {Dacc}, {A[4*kk:4*kk+4]}, {B[4*kk:4*kk+4]}, {"0" if kk==0 else Dacc}')
    for m in range(8):
        p(f'v_cvt_pk_f16_f32 {Pk[m]}, {Dacc[2*m]}, {Dacc[2*m+1]}')
    for m in range(8):
        p(f'buffer_store_dword {Pk[m]}, {so}, {rWs}, {SO[4*(m//2)+2*(m%2)]} offen')
    T(6); T.dump(pWs, sw)
    p('s_endpgm')
    hi1 = V.hi
    V = Alloc('v', 1)
    n = V(); g = V(); t = V(); t2 = V(); t3 = V(); m1 = V(); m2 = V(); ko = V(); wo = V(); do = V(); xo = V(); lwa = V(); lra = V(); yo = V()
    msk = V(4,4)
    KY = V(32,4); L = V(32,4); LD = V(16,4); FR = KY; FD = V(16,4)
    XR = V(4,4); STt = V(2,2); XF = V(8,2); XA = V(4,4)
    ACC = L
    Ta = V(); Tb = V(); Tc = V(); RD = V(12,4); HF = V(4,4)
    p('k2_ffn:')
    p(f'v_and_b32 {n}, 15, {lane}')
    p(f'v_lshrrev_b32 {g}, 4, {lane}')
    p(f'v_lshlrev_b32 {ko}, 4, {lane}')
    sw5 = sj; smat = st0
    p(f's_cmp_ge_u32 {sw}, 5')
    p(f's_cselect_b32 {smat}, 1, 0')
    p(f's_mul_i32 {st}, {smat}, 5')
    p(f's_sub_u32 {sw5}, {sw}, {st}')
    p(f'v_lshrrev_b32 {t}, 2, {n}')
    p(f'v_lshlrev_b32 {t}, 5, {t}')
    p(f'v_lshl_add_u32 {t}, {g}, 3, {t}')
    p(f's_lshl_b32 {st}, {sw5}, 7')
    p(f'v_add_u32 {t}, {st}, {t}')
    p(f'v_mul_u32_u24 {wo}, 3456, {t}')
    p(f'v_and_b32 {t}, 3, {n}')
    p(f's_lshl_b32 {st}, s2, 6')
    p(f'v_lshl_add_u32 {t}, {t}, 4, {st}')
    p(f'v_add_u32 {wo}, {wo}, {t}')
    p(f'v_mul_u32_u24 {do}, {8*1280}, {g}')
    p(f's_mul_i32 {st}, s2, {32*1280}')
    p(f's_lshl_b32 {st2}, {sw}, 7')
    p(f's_add_u32 {st}, {st}, {st2}')
    p(f'v_lshl_add_u32 {t}, {n}, 3, {st}')
    p(f'v_add_u32 {do}, {do}, {t}')
    for j in range(4): p(f's_mov_b32 {SO[j]}, {2*j*3456}')
    p(f's_mov_b32 {SO[4]}, {hx(KEY_OFF)}')
    p(f's_mov_b32 {SO[5]}, {hx(KEY_OFF+4096)}')
    p(f's_mov_b32 {SO[6]}, 5120')
    p(f's_mov_b32 {smask}, 0xffff0000')
    p(f's_mov_b32 {sp0}, 0x05040100')
    p(f's_mov_b32 {sp1}, 0x07060302')
    p('s_waitcnt lgkmcnt(0)')
    T(1)
    srd(p, rWs, pWs, WS_SIZE)
    for j in range(8):
        p(f'buffer_load_dwordx4 {KY[4*j:4*j+4]}, {ko}, {rWs}, {SO[4+j//4]} offen offset:{1024*(j%4)}')
    p(f's_cmp_eq_u32 {smat}, 0')
    p(f's_cselect_b32 {rW[0]}, {pG[0]}, {pU[0]}')
    p(f's_cselect_b32 {rW[1]}, {pG[1]}, {pU[1]}')
    p(f's_mov_b32 {rW[2]}, {640*3456}')
    p(f's_mov_b32 {rW[3]}, 0x00020000')
    srd(p, rD, pD, 1728*1280); srd(p, rX, pX, 2048*1280)
    for j in range(8):
        p(f'buffer_load_dwordx4 {L[4*j:4*j+4]}, {wo}, {rW}, {SO[j//2]} offen offset:{3456*(j%2)}')
    for j in range(8):
        p(f'buffer_load_dwordx2 {LD[2*j:2*j+2]}, {do}, {rD}, {SO[6] if j>=4 else 0} offen offset:{1280*(j%4)}')
    p(f'v_and_b32 {t}, 3, {n}')
    p(f'v_lshlrev_b32 {t}, 6, {t}')
    p(f'v_lshl_add_u32 {t}, {g}, 4, {t}')
    p(f's_lshl_b32 {st}, {sw5}, 8')
    p(f'v_add_u32 {xo}, {st}, {t}')
    p(f'v_mul_u32_u24 {lwa}, 48, {lane}')
    p(f's_lshl_b32 {st}, {sw}, 2')
    p(f'v_add_u32 {lwa}, {st}, {lwa}')
    p(f'v_lshrrev_b32 {t}, 3, {n}')
    p(f'v_bfe_u32 {t2}, {n}, 2, 1')
    p(f'v_lshl_add_u32 {t}, {t2}, 1, {t}')
    p(f'v_lshlrev_b32 {t}, 4, {t}')
    p(f'v_and_b32 {t2}, 3, {n}')
    p(f'v_lshl_add_u32 {t}, {t2}, 2, {t}')
    p(f'v_add_u32 {t}, {t}, {g}')
    p(f'v_mul_u32_u24 {lra}, 48, {t}')
    p(f'v_and_b32 {t}, 1, {n}')
    p(f'v_cmp_eq_u32 vcc, 0, {t}')
    p(f'v_mov_b32 {t2}, 0xffff')
    p(f'v_mov_b32 {t3}, {smask}')
    p(f'v_cndmask_b32 {t2}, {t3}, {t2}, vcc')
    p(f'v_bfe_u32 {t}, {n}, 1, 2')
    for v in range(4):
        p(f'v_cmp_eq_u32 vcc, {v}, {t}')
        p(f'v_cndmask_b32 {msk[v]}, 0, {t2}, vcc')
    p(f'v_lshrrev_b32 {t}, 1, {g}')
    p(f'v_mul_u32_u24 {yo}, 2560, {t}')
    p(f'v_and_b32 {t}, 1, {g}')
    p(f'v_lshl_add_u32 {t}, {n}, 2, {t}')
    p(f'v_lshl_add_u32 {yo}, {t}, 2, {yo}')
    p(f's_and_b32 {st}, s2, 1')
    p(f's_mul_i32 {st}, {st}, 5120')
    p(f's_lshl_b32 {st2}, {sw}, 8')
    p(f's_add_u32 {SO[7]}, {st}, {st2}')
    p(f's_add_u32 {SO[7]}, {SO[7]}, {hx(Y_OFF)}')
    p('s_waitcnt vmcnt(16)')
    T(2)
    p(f'v_max_u32 {m1}, {KY[0]}, {KY[1]}')
    p(f'v_min_u32 {m2}, {KY[0]}, {KY[1]}')
    for j in range(2,32):
        p(f'v_med3_u32 {m2}, {m1}, {m2}, {KY[j]}')
        p(f'v_max_u32 {m1}, {m1}, {KY[j]}')
    for mod in ('quad_perm:[1,0,3,2]','quad_perm:[2,3,0,1]','row_half_mirror','row_mirror'):
        top2_merge_dpp(p, m1, m2, t, t2, mod+' row_mask:0xf bank_mask:0xf')
    a1=SO[8]; a2=SO[9]; b1=SO[10]; b2=SO[11]
    p(f'v_readlane_b32 {sk1}, {m1}, 0')
    p(f'v_readlane_b32 {sk2}, {m2}, 0')
    for ln in (16,32,48):
        p(f'v_readlane_b32 {b1}, {m1}, {ln}')
        p(f'v_readlane_b32 {b2}, {m2}, {ln}')
        p(f's_max_u32 {sk2}, {sk2}, {b2}')
        p(f's_min_u32 {a1}, {sk1}, {b1}')
        p(f's_max_u32 {sk2}, {sk2}, {a1}')
        p(f's_max_u32 {sk1}, {sk1}, {b1}')
    p(f's_and_b32 {a1}, {sk1}, 2047')
    p(f's_and_b32 {a2}, {sk2}, 2047')
    p(f'v_and_b32 {t}, 4, {n}')
    p(f'v_cmp_eq_u32 vcc, 0, {t}')
    p(f'v_mov_b32 {t}, {a1}')
    p(f'v_mov_b32 {t2}, {a2}')
    p(f'v_cndmask_b32 {t}, {t2}, {t}, vcc')
    p(f'v_mul_u32_u24 {t2}, 1280, {t}')
    p(f'v_add_u32 {t2}, {t2}, {xo}')
    p(f'v_lshlrev_b32 {t}, 3, {t}')
    p(f's_mov_b32 {b1}, {hx(ST_OFF)}')
    p(f'buffer_load_dwordx4 {XR}, {t2}, {rX}, 0 offen')
    p(f'buffer_load_dwordx2 {STt}, {t}, {rWs}, {b1} offen')
    T(3)
    p('s_waitcnt vmcnt(10)')
    T(4)
    for pp in range(4):
        for e in range(2):
            c = 2*pp+e
            for v in range(4):
                p(f'v_perm_b32 {FR[4*c+v]}, {L[4*(2*v+1)+pp]}, {L[4*(2*v)+pp]}, {sp1 if e else sp0}')
    p('s_waitcnt vmcnt(2)')
    for pp in range(2):
        for e in range(2):
            c = 2*pp+e
            for v in range(4):
                p(f'v_perm_b32 {FD[4*c+v]}, {LD[2*(2*v+1)+pp]}, {LD[2*(2*v)+pp]}, {sp1 if e else sp0}')
    p('s_waitcnt vmcnt(0)')
    T(5)
    for j in range(4):
        p(f'v_lshlrev_b32 {XF[2*j]}, 16, {XR[j]}')
        p(f'v_and_b32 {XF[2*j+1]}, {smask}, {XR[j]}')
    for j in range(8): p(f'v_sub_f32 {XF[j]}, {XF[j]}, {STt[0]}')
    for j in range(4): p(f'v_cvt_pk_bf16_f32 {XA[j]}, {XF[2*j]}, {XF[2*j+1]}')
    for j in range(4):
        p(f'v_lshlrev_b32 {XF[2*j]}, 16, {XA[j]}')
        p(f'v_and_b32 {XF[2*j+1]}, {smask}, {XA[j]}')
    for j in range(8): p(f'v_mul_f32 {XF[j]}, {XF[j]}, {STt[1]}')
    for j in range(4): p(f'v_cvt_pk_bf16_f32 {XA[j]}, {XF[2*j]}, {XF[2*j+1]}')
    for c in range(8):
        p(f'v_mfma_f32_16x16x32_bf16 {ACC[4*c:4*c+4]}, {XA}, {FR[4*c:4*c+4]}, 0')
    p('s_cmp_lg_u32 s2, 0')
    p('s_cbranch_scc1 k2_nopub')
    p(f'v_and_b32 {t}, 4, {n}')
    p(f'v_mul_u32_u24 {t}, 320, {t}')
    p(f'v_add_u32 {t}, {t}, {xo}')
    p(f's_mov_b32 {b1}, {hx(XS_OFF)}')
    p(f'buffer_store_dwordx4 {XA}, {t}, {rWs}, {b1} offen')
    p(f'v_mov_b32 {XF[0]}, {sk1}')
    p(f'v_mov_b32 {XF[1]}, {sk2}')
    p(f'v_mov_b32 {t2}, 0')
    p(f's_mov_b32 {b2}, {hx(SEL_OFF)}')
    p(f'buffer_store_dwordx2 {XF[0:2]}, {t2}, {rWs}, {b2} offen')
    p('k2_nopub:')
    for c in range(8):
        b = c % 4; rm = 0x3 if c < 4 else 0xc
        def ror(r):
            return (4*(b - r)) % 16
        r1,r2,r3 = (b+1)%4,(b+2)%4,(b+3)%4
        p(f'v_add_f32_dpp {Ta}, {ACC[4*c+r1]}, {ACC[4*c+b]} row_ror:{ror(r1)} row_mask:{rm:#x} bank_mask:{1<<b:#x}')
        p(f'v_mov_b32_dpp {Tb}, {ACC[4*c+r2]} row_ror:{ror(r2)} row_mask:{rm:#x} bank_mask:{1<<b:#x}')
        p(f'v_mov_b32_dpp {Tc}, {ACC[4*c+r3]} row_ror:{ror(r3)} row_mask:{rm:#x} bank_mask:{1<<b:#x}')
    p(f'v_add_f32 {Ta}, {Ta}, {Tb}')
    p(f'v_add_f32 {Ta}, {Ta}, {Tc}')
    p(f'ds_write_b32 {lwa}, {Ta}')
    p('s_waitcnt lgkmcnt(0)')
    p('s_barrier')
    p(f'ds_read_b128 {RD[0:4]}, {lra}')
    p(f'ds_read_b128 {RD[4:8]}, {lra} offset:16')
    p(f'ds_read_b64 {RD[8:10]}, {lra} offset:32')
    p('s_waitcnt lgkmcnt(0)')
    p(f'v_add_f32 {t}, {RD[0]}, {RD[1]}')
    p(f'v_add_f32 {t2}, {RD[5]}, {RD[6]}')
    p(f'v_add_f32 {t3}, {RD[2]}, {RD[3]}')
    p(f'v_add_f32 {Ta}, {RD[7]}, {RD[8]}')
    p(f'v_add_f32 {t}, {t}, {RD[4]}')
    p(f'v_add_f32 {t2}, {t2}, {RD[9]}')
    p(f'v_add_f32 {t}, {t}, {t3}')
    p(f'v_add_f32 {t2}, {t2}, {Ta}')
    bf16r(p, t, t, smask); bf16r(p, t2, t2, smask)
    silu(p, t, t, t3)
    bf16r(p, t, t, smask)
    p(f'v_mul_f32 {t}, {t}, {t2}')
    p(f'v_cvt_pk_bf16_f32 {t}, {t}, {t}')
    for v in range(4): p(f'v_and_b32 {HF[v]}, {t}, {msk[v]}')
    for c in range(4):
        p(f'v_mfma_f32_16x16x32_bf16 {ACC[4*c:4*c+4]}, {HF}, {FD[4*c:4*c+4]}, 0')
    for c in range(4):
        p(f'v_pk_add_f32 {ACC[4*c:4*c+2]}, {ACC[4*c:4*c+2]}, {ACC[4*c+2:4*c+4]}')
    for c in range(4):
        p(f'v_add_f32 {RD[c]}, {ACC[4*c]}, {ACC[4*c+1]}')
    p(f'v_permlane16_swap_b32 {RD[0]}, {RD[1]}')
    p(f'v_permlane16_swap_b32 {RD[2]}, {RD[3]}')
    p(f'v_add_f32 {RD[0]}, {RD[0]}, {RD[1]}')
    p(f'v_add_f32 {RD[2]}, {RD[2]}, {RD[3]}')
    p(f'buffer_atomic_add_f32 {RD[0]}, {yo}, {rWs}, {SO[7]} offen')
    p(f'buffer_atomic_add_f32 {RD[2]}, {yo}, {rWs}, {SO[7]} offen offset:8')
    T(6); T.dump(pWs, sw)
    p('k2_end:')
    p('s_endpgm')
    return p.finish(), desc('k2_kernel', max(V.hi,hi1), S.hi), NWG

def k3():
    p = Prog(); S = Alloc('s', 3); V = Alloc('v', 1); lane = Reg('v',0,1)
    head(p, 'k3_kernel')
    pWs = S(2,2); pO = S(2,2); sel = S(2,2); pSel = S(2,2)
    rWs = S(4,4); rO = S(4,4)
    sw = S(); st = S(); st2 = S(); sc = S(); scd = S(); stau = S(); smask = S(); ssg = S()
    SW = S(8); SX = S(16); SOo = S(16)
    n = V(); h = V(); col = V(); wo = V(); xo = V(); oo = V(); t = V(); t2 = V(); t3 = V(); stp = V(); hf = V(); tmp=[V(),V(),V()]
    B = V(16,4); A = V(16,4); Y = V(16,4); XG = V(16,4); G = V(16,4)
    y0 = V(); y1 = V(); xs = V()
    p('s_cmp_ge_u32 s2, 256')
    p('s_cbranch_scc1 k3_end')
    T = Stamper(p, 2, 5); T(0); T.init()
    p(f's_load_dwordx2 {pWs}, s[0:1], 96')
    p(f's_load_dwordx2 {pO}, s[0:1], 80')
    p(f'v_lshrrev_b32 {t}, 6, v0')
    p(f'v_and_b32 {lane}, 63, v0')
    p(f'v_readfirstlane_b32 {sw}, {t}')
    p(f'v_and_b32 {n}, 31, {lane}')
    p(f'v_lshrrev_b32 {h}, 5, {lane}')
    p(f's_lshr_b32 {sc}, s2, 2')
    p(f's_and_b32 {st}, s2, 3')
    p(f's_mul_i32 {stau}, {st}, 5')
    p(f's_add_u32 {stau}, {stau}, {sw}')
    p(f's_lshl_b32 {st}, {stau}, 5')
    p(f'v_add_u32 {col}, {st}, {n}')
    p(f'v_sub_u32 {t}, 640, {col}')
    p(f's_sub_u32 {st}, 64, {sc}')
    p(f's_and_b32 {st}, {st}, 63')
    p(f's_mov_b32 {ssg}, {fl(1/2048)}')
    p(f's_mov_b32 {st2}, {fl(-1/2048)}')
    p(f's_cmp_lt_u32 {stau}, 10')
    p(f's_cselect_b32 {scd}, {sc}, {st}')
    p(f's_cselect_b32 {ssg}, {ssg}, {st2}')
    p(f'v_min_u32 {t}, {t}, {col}')
    p(f's_mul_i32 {st}, {scd}, {32*PITCH}')
    p(f's_add_u32 {st}, {st}, {hx(W_OFF)}')
    p(f'v_lshl_add_u32 {wo}, {t}, 2, {st}')
    p(f'v_mul_u32_u24 {t}, {4*PITCH}, {h}')
    p(f'v_add_u32 {wo}, {wo}, {t}')
    p(f'v_mul_u32_u24 {t}, {256*1280}, {h}')
    p(f's_mul_i32 {st}, {sc}, 1280')
    p(f'v_lshl_add_u32 {oo}, {col}, 1, {st}')
    p(f'v_add_u32 {oo}, {oo}, {t}')
    p(f'v_lshlrev_b32 {xo}, 1, {oo}')
    for i in range(8): p(f's_mov_b32 {SW[i]}, {(8*(i//2)+2*(i%2))*PITCH}')
    for R in range(16):
        k = 8*(R//4)+R%4
        p(f's_mov_b32 {SX[R]}, {hx(XG_OFF + k*64*2560)}')
        p(f's_mov_b32 {SOo[R]}, {hx(k*64*1280)}')
    p(f's_mov_b32 {smask}, 0xffff0000')
    p('s_waitcnt lgkmcnt(0)')
    T(1)
    srd(p, rWs, pWs, WS_SIZE); srd(p, rO, pO, 2048*1280)
    p(f's_add_u32 {pSel[0]}, {pWs[0]}, {hx(SEL_OFF)}')
    p(f's_addc_u32 {pSel[1]}, {pWs[1]}, 0')
    p(f's_load_dwordx2 {sel}, {pSel}, 0')
    for R in range(16):
        p(f'buffer_load_dword {B[R]}, {wo}, {rWs}, {SW[R//2]} offen offset:{PITCH*(R%2)}')
    for R in range(16):
        p(f'buffer_load_dword {XG[R]}, {xo}, {rWs}, {SX[R]} offen')
    p(f'v_lshl_add_u32 {t}, {n}, 6, {sc}')
    p(f'v_cvt_f32_u32 {stp}, {t}')
    p(f'v_mul_f32 {stp}, {ssg}, {stp}')
    p(f'v_cvt_f32_u32 {hf}, {h}')
    p(f'v_mul_f32 {hf}, 4.0, {hf}')
    gen_A(p, A, stp, None, None, hf, tmp)
    T(2)
    for kk in range(4):
        p(f's_waitcnt vmcnt({28-4*kk})')
        p(f'v_mfma_f32_32x32x16_f16 {Y}, {A[4*kk:4*kk+4]}, {B[4*kk:4*kk+4]}, {"0" if kk==0 else Y}')
    T(3)
    p('s_waitcnt vmcnt(0) lgkmcnt(0)')
    T(4)
    for R in range(16):
        p(f'v_lshlrev_b32 {G[R]}, 16, {XG[R]}')
        p(f'v_and_b32 {XG[R]}, {smask}, {XG[R]}')
    for tok in range(2):
        p(f's_and_b32 {st}, {sel[tok]}, 63')
        p(f's_cmp_lg_u32 {st}, {sc}')
        p(f's_cbranch_scc1 k3_skip{tok}')
        p(f'v_lshlrev_b32 {t}, 2, {col}')
        p(f'v_lshlrev_b32 {t2}, 1, {col}')
        p(f's_mov_b32 {st}, {hx(Y_OFF + tok*2560)}')
        p(f's_mov_b32 {st2}, {hx(Y_OFF + 5120 + tok*2560)}')
        p(f'buffer_load_dword {y0}, {t}, {rWs}, {st} offen')
        p(f'buffer_load_dword {y1}, {t}, {rWs}, {st2} offen')
        p(f's_mov_b32 {st}, {hx(XS_OFF + tok*1280)}')
        p(f'buffer_load_ushort {xs}, {t2}, {rWs}, {st} offen')
        p(f'v_mov_b32 {t}, {sel[tok]}')
        p(f'v_ashrrev_i32 {t2}, 31, {t}')
        p(f'v_not_b32 {t2}, {t2}')
        p(f'v_or_b32 {t2}, 0x80000000, {t2}')
        p(f'v_xor_b32 {t}, {t}, {t2}')
        p(f'v_and_b32 {t}, {smask}, {t}')
        p(f'v_mul_f32 {t}, {fl(-LOG2E)}, {t}')
        p(f'v_exp_f32 {t}, {t}')
        p(f'v_add_f32 {t}, 1.0, {t}')
        p(f'v_rcp_f32 {t}, {t}')
        bf16r(p, t, t, smask)
        p('s_waitcnt vmcnt(0)')
        p(f'v_add_f32 {y0}, {y0}, {y1}')
        bf16r(p, y0, y0, smask)
        p(f'v_mul_f32 {y0}, {y0}, {t}')
        bf16r(p, y0, y0, smask)
        p(f'v_lshlrev_b32 {xs}, 16, {xs}')
        p(f'v_add_f32 {y0}, {y0}, {xs}')
        bf16r(p, y0, y0, smask)
        silu(p, y0, y0, t)
        bf16r(p, y0, y0, smask)
        p(f's_bfe_u32 {st}, {sel[tok]}, 0x50006')
        p(f'v_lshlrev_b32 {t}, 2, {h}')
        p(f'v_sub_u32 {t}, {st}, {t}')
        for R in range(16):
            p(f'v_cmp_eq_u32 vcc, {8*(R//4)+R%4}, {t}')
            p(f'v_cndmask_b32 {G[R]}, {G[R]}, {y0}, vcc')
        p(f'k3_skip{tok}:')
    for R in range(16):
        p(f'v_fma_f32 {G[R]}, {Y[R]}, {G[R]}, {XG[R]}')
    for R in range(0,16,2):
        p(f'v_cvt_pk_bf16_f32 {G[R]}, {G[R]}, {G[R+1]}')
    for R in range(0,16,2):
        p(f'buffer_store_short {G[R]}, {oo}, {rO}, {SOo[R]} offen')
        p(f'buffer_store_short_d16_hi {G[R]}, {oo}, {rO}, {SOo[R+1]} offen')
    T(6); T.dump(pWs, sw)
    p('k3_end:')
    p('s_endpgm')
    return p.finish(), desc('k3_kernel', V.hi, S.hi)

def main(out):
    c1,d1 = k1(); c2,d2,n2 = k2(); c3,d3 = k3()
    hdr = f"""; FNet-mix + MoD block: three launches (row FFT / column FFT stage 1 + FFN / column FFT stage 2 + epilogue)
; @launch kernel=k1_kernel grid=(256,1,1) block=(512,1,1) lds=10240
; @launch kernel=k2_kernel grid=({n2},1,1) block=(640,1,1) lds=3072
; @launch kernel=k3_kernel grid=(256,1,1) block=(320,1,1) lds=0
.amdgcn_target "amdgcn-amd-amdhsa--gfx950"
.text
"""
    if os.environ.get('DIAG'):
        import diag
        ent=[(0,0,2048,0,'min'),(0,0,2048,1,'max'),(0,0,2048,2,'max'),(0,0,2048,3,'max'),(0,0,2048,7,'max'),
             (1,0,1824,0,'min'),(1,0,1824,1,'max'),(1,0,540,2,'max'),(1,0,540,5,'max'),(1,0,1824,7,'max'),
             (2,0,1280,0,'min'),(2,0,1280,1,'max'),(2,0,1280,2,'max'),(2,0,1280,4,'max'),(2,0,1280,7,'max')]
        c4,d4=diag.k4(ent,0,STAMP_OFF)
        hdr=hdr.replace('.amdgcn_target','; @launch kernel=k9_kernel grid=(1,1,1) block=(256,1,1) lds=0\n.amdgcn_target')
        c3+=c4; d3+=d4
    if os.environ.get('SPIN'):
        import diag
        sp=eval(os.environ['SPIN'])
        c4,d4=diag.kspin(STAMP_OFF,*sp)
        hdr=hdr.replace('.amdgcn_target','; @launch kernel=k9_kernel grid=(1,1,1) block=(64,1,1) lds=0\n.amdgcn_target')
        c3+=c4; d3+=d4
    open(out,'w').write(hdr + c1 + c2 + c3 + '.section .rodata,"a"\n' + d1 + d2 + d3)

if __name__ == '__main__':
    main(sys.argv[1])
```
